```python
import torch

def _softmax(x, axis=-1):
    return torch.softmax(x, dim=axis)
def _gelu(x):
    return torch.nn.functional.gelu(x, approximate="tanh")
def _silu(x):
    return torch.nn.functional.silu(x)
def _sigmoid(x):
    return torch.sigmoid(x)
def _layernorm(x, axis=-1, eps=1e-5):
    m = x.mean(dim=axis, keepdim=True)
    v = x.var(dim=axis, keepdim=True, unbiased=False)
    return (x - m) / torch.sqrt(v + eps)
def _scatter_add(tgt, idx, src, axis=0):
    return tgt.clone().index_add_(axis, idx, src)
def _segment_sum(src, seg, n):
    out = torch.zeros((n,) + src.shape[1:], dtype=src.dtype)
    return out.index_add_(0, seg, src)
def _pad(x, pw):
    flat = tuple(v for pair in reversed(pw) for v in pair)
    return torch.nn.functional.pad(x, flat)

kernel_name = 'recurrent_scan__sliding_block_cached__swiglu_ffn__decode'

def setup_inputs():

    _w = (lambda a: (lambda t: t.to(torch.bfloat16) if t.is_floating_point() else t)(torch.as_tensor(a)))
    def _A_setup():
        B, Sq, D = 1, 1, 576
        Hq, Hkv, Sk, Dh = 32, 16, 8192, 128
        assert Hq % Hkv == 0, (Hq, Hkv)
        return {
            "x": _w((lambda *s: torch.randn(*s, dtype=torch.bfloat16) * 0.05)(B, Sq, D)),
            "k_cache": _w((lambda *s: torch.randn(*s, dtype=torch.bfloat16) * 0.8)(B, Hkv, Sk, Dh)),
            "v_cache": _w((lambda *s: torch.randn(*s, dtype=torch.bfloat16) * 0.2)(B, Hkv, Sk, Dh)),
            "wq": _w((lambda *s: torch.randn(*s, dtype=torch.bfloat16) * 0.8)(D, Hq * Dh) * (D ** -0.5)),
            "wo": _w((lambda *s: torch.randn(*s, dtype=torch.bfloat16) * 0.2)(Hq * Dh, D) * ((Hq * Dh) ** -0.5)),
        }
    _A_in = _A_setup()

    def _B_setup():
        B, S, D, F = 1, 1, 576, 4608
        return {
            "x": _w((lambda *s: torch.randn(*s, dtype=torch.bfloat16) * 0.05)(B, S, D)),
            "w_gate": _w((lambda *s: torch.randn(*s, dtype=torch.bfloat16) * 0.1)(D, F)),
            "w_up": _w((lambda *s: torch.randn(*s, dtype=torch.bfloat16) * 0.1)(D, F)),
            "w_down": _w((lambda *s: torch.randn(*s, dtype=torch.bfloat16) * 0.1)(F, D)),
        }
    _B_in = _B_setup()

    return {
        "A_x": _A_in["x"],
        "A_k_cache": _A_in["k_cache"],
        "A_v_cache": _A_in["v_cache"],
        "A_wq": _A_in["wq"],
        "A_wo": _A_in["wo"],
        "B_x": _B_in["x"],
        "B_w_gate": _B_in["w_gate"],
        "B_w_up": _B_in["w_up"],
        "B_w_down": _B_in["w_down"],
    }

def reference(A_x, A_k_cache, A_v_cache, A_wq, A_wo, B_x, B_w_gate, B_w_up, B_w_down):
    def _A_ref(x, k_cache, v_cache, wq, wo):
        B, Sq, D = x.shape
        Hq, Dh = 32, 128
        Hkv, Sk = k_cache.shape[1], k_cache.shape[2]
        W = min(4096, max(256, Sk // 4))
        rep = Hq // Hkv
        q = (lambda x, *d: x.permute(*d))((x @ wq).reshape(B, Sq, Hq, Dh), 0, 2, 1, 3)
        k = (lambda x, n, axis: torch.repeat_interleave(x, n, dim=axis))(k_cache[:, :, Sk - W:, :], rep, axis=1)
        v = (lambda x, n, axis: torch.repeat_interleave(x, n, dim=axis))(v_cache[:, :, Sk - W:, :], rep, axis=1)
        scores = torch.einsum("bhqd,bhkd->bhqk", q, k) * (Dh ** -0.5)
        p = _softmax(scores, axis=-1)
        o = torch.einsum("bhqk,bhkd->bhqd", p, v)
        return (lambda x, *d: x.permute(*d))(o, 0, 2, 1, 3).reshape(B, Sq, Hq * Dh) @ wo

    def _B_ref(x, w_gate, w_up, w_down):
        g = _silu(x @ w_gate)
        u = x @ w_up
        return (g * u) @ w_down

    x = A_x
    xn = _layernorm(x, axis=-1)
    s = _A_ref(xn, A_k_cache, A_v_cache, A_wq, A_wo)
    g = _silu(_B_ref(xn, B_w_gate, B_w_up, B_w_down))
    return x + s * g
```

```python
import re

TRANS = ("v_exp_f32", "v_log_f32", "v_rcp_f32", "v_rsq_f32", "v_sqrt_f32", "v_sin_f32", "v_cos_f32")

def _regs(tok):
    tok = tok.strip()
    neg = tok.startswith("-")
    if neg: tok = tok[1:]
    m = re.fullmatch(r"([vs])(\d+)", tok)
    if m: return [m.group(1) + m.group(2)]
    m = re.fullmatch(r"([vs])\[(\d+):(\d+)\]", tok)
    if m: return [m.group(1) + str(i) for i in range(int(m.group(2)), int(m.group(3)) + 1)]
    if tok == "vcc": return ["vcc"]
    if tok in ("exec",): return ["exec"]
    return []

def _split_ops(s):
    ops, depth, cur = [], 0, ""
    for ch in s:
        if ch == "[": depth += 1
        if ch == "]": depth -= 1
        if ch == "," and depth == 0:
            ops.append(cur.strip()); cur = ""
        else:
            cur += ch
    if cur.strip(): ops.append(cur.strip())
    return ops

class Ins:
    __slots__ = ("text", "mn", "ops", "mods", "rd", "wr", "kind", "states")
    def __init__(self, text):
        self.text = text
        t = text.strip()
        mn, _, rest = t.partition(" ")
        self.mn = mn
        ops = _split_ops(rest)
        mods = ""
        if ops:
            last = ops[-1].split()
            if len(last) > 1:
                ops[-1] = last[0]; mods = " ".join(last[1:])
        self.ops, self.mods = ops, mods
        self.rd, self.wr = set(), set()
        self.kind = set()
        self.states = 1
        self.classify()

    def classify(self):
        mn, ops, mods = self.mn, self.ops, self.mods
        k = self.kind
        if mn == "s_nop":
            self.states = int(ops[0], 0) + 1; k.add("nop"); return
        if mn.startswith("s_"):
            k.add("salu"); return
        if mn.startswith("buffer_") or mn.startswith("global_") or mn.startswith("flat_"):
            k.add("vmem")
            is_store = "_store_" in mn
            is_atomic = "_atomic_" in mn
            regs = [_regs(o) for o in ops]
            if mn in ("buffer_inv", "buffer_wbl2"): return
            if is_store:
                for r in regs: self.rd.update(r)
                if mn.endswith("x4") or mn.endswith("x3"):
                    k.add("widestore")
            elif is_atomic:
                for r in regs: self.rd.update(r)
            else:
                self.wr.update(regs[0])
                for r in regs[1:]: self.rd.update(r)
            return
        if mn.startswith("ds_"):
            k.add("ds")
            regs = [_regs(o) for o in ops]
            if mn.startswith("ds_read") or mn.startswith("ds_bpermute") or mn.startswith("ds_permute") or mn.startswith("ds_swizzle"):
                self.wr.update(regs[0])
                for r in regs[1:]: self.rd.update(r)
            else:
                for r in regs: self.rd.update(r)
            return
        if mn.startswith("v_"):
            k.add("valu")
            regs = [_regs(o) for o in ops]
            base = mn.replace("_e32", "").replace("_e64", "").replace("_dpp", "")
            if base in TRANS: k.add("trans")
            if base.startswith("v_dot2"): k.add("dot")
            if re.search(r"(row_|quad_perm|wave_)", mods): k.add("dpp")
            if base.startswith("v_permlane") and base.endswith("_swap_b32"):
                k.add("permswap")
                for r in regs: self.rd.update(r); self.wr.update(r)
                return
            if base in ("v_readlane_b32", "v_readfirstlane_b32"):
                k.add("readlane")
            if base == "v_writelane_b32": k.add("writelane")
            self.wr.update(regs[0])
            start = 1
            if base in ("v_add_co_u32", "v_sub_co_u32", "v_addc_co_u32", "v_subb_co_u32", "v_div_scale_f32", "v_mad_u64_u32"):
                self.wr.update(regs[1]); start = 2
            for r in regs[start:]: self.rd.update(r)
            if base in ("v_fmac_f32", "v_dot2c_f32_bf16", "v_writelane_b32") : self.rd.update(regs[0])
            if base.startswith("v_cndmask") and len(ops) == 3: self.rd.add("vcc")
            if base == "v_cndmask_b32" and len(ops) == 3: self.rd.add("vcc")
            if "dpp" in k: self.rd.update(regs[0])
            return
        raise ValueError("unknown instr: " + self.text)

class Asm:
    def __init__(self):
        self.lines = []
    def I(self, text):
        for t in text.strip().split("\n"):
            t = t.split(";")[0].strip()
            if t: self.lines.append(("i", Ins(t)))
    def C(self, text): self.lines.append(("c", text))
    def L(self, name): self.lines.append(("l", name))
    def raw(self, text): self.lines.append(("r", text))

    @staticmethod
    def need(prev, cur):
        n = 0
        pk, ck = prev.kind, cur.kind
        if "valu" in pk:
            vw = {r for r in prev.wr if r[0] == "v" and r != "vcc"}
            sw = {r for r in prev.wr if r[0] == "s" or r == "vcc"}
            if vw:
                if "dpp" in ck and vw & cur.rd: n = max(n, 2)
                if "readlane" in ck and vw & cur.rd: n = max(n, 1)
                if "permswap" in ck and vw & cur.rd: n = max(n, 2)
                if "trans" in pk and "valu" in ck and vw & cur.rd: n = max(n, 1)
                if "dot" in pk:
                    touched = vw & (cur.rd | cur.wr)
                    if touched:
                        if "dot" in ck and cur.mn == prev.mn:
                            ab = set(_regs(cur.ops[1])) | set(_regs(cur.ops[2]))
                            if vw & ab: n = max(n, 3)
                        else:
                            n = max(n, 3)
            if sw:
                if "valu" in ck and sw & cur.rd: n = max(n, 2)
                if ("readlane" in ck or "writelane" in ck) and len(cur.ops) == 3 and sw & set(_regs(cur.ops[2])): n = max(n, 4)
                if "vmem" in ck and sw & cur.rd: n = max(n, 5)
        if "widestore" in pk:
            data = set(_regs(prev.ops[0] if prev.mn.startswith("buffer_") else prev.ops[1]))
            if data & cur.wr:
                n = max(n, 2 if "valu" in ck else 1)
        return n

    def render(self):
        out = []
        hist = []
        for kind, p in self.lines:
            if kind == "c": out.append("    ; " + p); continue
            if kind == "r": out.append(p); continue
            if kind == "l":
                out.append(p + ":")
                out.append("    s_nop 4")
                hist = []
                continue
            ins = p
            dist = 0; req = 0
            for prev in reversed(hist):
                nd = Asm.need(prev, ins)
                if nd > dist: req = max(req, nd - dist)
                dist += prev.states
                if dist >= 6: break
            if req > 0:
                out.append(f"    s_nop {req-1}")
                hist.append(Ins(f"s_nop {req-1}"))
            out.append("    " + ins.text)
            hist.append(ins)
            if len(hist) > 12: hist = hist[-12:]
            if ins.mn.startswith("s_cbranch") or ins.mn == "s_branch":
                pass
        return "\n".join(out) + "\n"
```

```python
import struct
from asmlib import Asm

def f32bits(x): return struct.unpack("<I", struct.pack("<f", x))[0]
import math
SCALE_LOG2E = (128 ** -0.5) * math.log2(math.e)
LOG2E = math.log2(math.e)

NT = 576
LN_RED1, LN_RED2 = 0, 64
XNBUF = 128
QPART = 2816
GUPART = 5120
QBUF = 23552
OBUF = 24576
STATS = 32768
OG = 33024
ST = 34048
GG = 34304
COEFO = 36608
COEFH = 36672
PS = 36864
PY = 55296
FB = 73728
LDS_BYTES = 98304
R1 = 0x0
R2 = 0x20000
R3 = 0x140000
R3S = 0x1C0000
R4 = 0x200000
WS_BYTES = 268435456

S_G, S_S, S_CB, S_KQ = 3, 4, 5, 6
S_T0, S_T1, S_T2, S_T3 = 7, 8, 9, 10
S_EX = 12
SRD_X, SRD_WQ, SRD_K, SRD_V, SRD_GU, SRD_WO, SRD_WD, SRD_WS, SRD_OUT = 40, 44, 48, 52, 56, 60, 64, 68, 72
S_OFFQ2 = 76
S_OFF8 = 76
S_WAVE = 81
S_TAG = 82
S_M0, S_M1 = 84, 85
S_C = 86
S_TMPA, S_TMPB = 88, 89
S_OFFR = 90

def v(n): return f"v{n}"
def vr(n, k): return f"v[{n}:{n+k-1}]"
def s(n): return f"s{n}"
def sr(n, k=4): return f"s[{n}:{n+k-1}]"

class Ctx:
    def __init__(self):
        self.stmod = ""
        self.ldmod = ""
        self.nlabel = 0
    def lab(self, base):
        self.nlabel += 1
        return f"L_{base}_{self.nlabel}"

V_T, V_LANE, V_RG, V_CH, V_T16 = 0, 1, 2, 3, 4

def prologue(a, c, exit_label):
    a.C("prologue: workgroup ids, kernarg pointers, SRDs")
    a.I(f"""
    s_cmp_ge_u32 s2, 256
    s_cbranch_scc1 {exit_label}
    s_load_dwordx16 s[16:31], s[0:1], 0
    s_load_dwordx8 s[32:39], s[0:1], 64
    s_lshr_b32 s{S_G}, s2, 4
    s_and_b32 s{S_S}, s2, 15
    s_lshr_b32 s{S_CB}, s{S_S}, 2
    s_and_b32 s{S_KQ}, s{S_S}, 3
    v_and_b32 v{V_LANE}, 63, v0
    v_mul_u32_u24 v{V_RG}, 3641, v0
    v_lshrrev_b32 v{V_RG}, 18, v{V_RG}
    v_mul_u32_u24 v{V_CH}, 72, v{V_RG}
    v_sub_u32 v{V_CH}, v0, v{V_CH}
    v_lshlrev_b32 v{V_T16}, 4, v0
    v_lshrrev_b32 v5, 6, v0
    v_readfirstlane_b32 s{S_WAVE}, v5
    s_mov_b32 s{S_OFFQ2}, {72*8192}
    """)
    for i in range(1, 5):
        a.I(f"s_mov_b32 s{S_OFF8+i}, {8*i*9216}")
    a.I(f"s_mov_b32 s{S_C}, {f32bits(SCALE_LOG2E):#x}")
    a.I(f"s_mov_b32 s{S_OFFR}, 9216\ns_mov_b32 s{S_OFFR+1}, 18432")
    a.I("s_waitcnt lgkmcnt(0)")
    def srd(dst, plo, off_s, nrec):
        if off_s is None:
            a.I(f"s_mov_b32 s{dst}, s{plo}\ns_mov_b32 s{dst+1}, s{plo+1}")
        else:
            a.I(f"s_add_u32 s{dst}, s{plo}, s{off_s}\ns_addc_u32 s{dst+1}, s{plo+1}, 0")
        a.I(f"s_mov_b32 s{dst+2}, {nrec}\ns_mov_b32 s{dst+3}, 0x00020000")
    srd(SRD_X, 16, None, 1152)
    a.I(f"""
    s_mul_i32 s{S_T0}, s{S_KQ}, 1179648
    s_lshl_b32 s{S_T1}, s{S_G}, 9
    s_add_u32 s{S_T0}, s{S_T0}, s{S_T1}
    s_lshl_b32 s{S_T1}, s{S_CB}, 7
    s_add_u32 s{S_T0}, s{S_T0}, s{S_T1}
    s_sub_u32 s{S_T2}, 4718592, s{S_T0}
    """)
    srd(SRD_WQ, 22, S_T0, f"s{S_T2}")
    a.I(f"""
    s_lshl_b32 s{S_T0}, s{S_G}, 21
    s_lshl_b32 s{S_T1}, s{S_S}, 15
    s_add_u32 s{S_T0}, s{S_T0}, s{S_T1}
    s_add_u32 s{S_T0}, s{S_T0}, 1572864
    """)
    srd(SRD_K, 18, S_T0, 32768)
    srd(SRD_V, 20, S_T0, 32768)
    a.I(f"""
    s_cmp_lt_u32 s{S_G}, 8
    s_cselect_b32 s{S_TMPA}, s28, s30
    s_cselect_b32 s{S_TMPB}, s29, s31
    s_mul_i32 s{S_T0}, s{S_S}, 331776
    s_and_b32 s{S_T1}, s{S_G}, 7
    s_mul_i32 s{S_T1}, s{S_T1}, 1152
    s_add_u32 s{S_T0}, s{S_T0}, s{S_T1}
    """)
    srd(SRD_GU, S_TMPA, S_T0, 36 * 9216)
    a.I(f"s_mul_i32 s{S_T0}, s2, 18432")
    srd(SRD_WO, 24, S_T0, 18432)
    a.I(f"s_mul_i32 s{S_T0}, s2, 20736")
    srd(SRD_WD, 32, S_T0, 20736)
    srd(SRD_WS, 38, None, WS_BYTES)
    srd(SRD_OUT, 34, None, 1152)

def wave_reduce_to63(a, reg, op="v_add_f32"):
    for sh in (1, 2, 4, 8):
        a.I(f"{op} v{reg}, v{reg}, v{reg} row_shr:{sh}")
    a.I(f"{op} v{reg}, v{reg}, v{reg} row_bcast:15 row_mask:0xa")
    a.I(f"{op} v{reg}, v{reg}, v{reg} row_bcast:31 row_mask:0xc")

def row_allreduce(a, regs, op="v_add_f32"):
    for sh in (8, 4, 2, 1):
        for r in regs:
            a.I(f"{op} v{r}, v{r}, v{r} row_ror:{sh}")

def to_bf16_lo(a, dst, src):
    a.I(f"v_cvt_pk_bf16_f32 v{dst}, v{src}, 0")

def round_bf16(a, dst, src):
    a.I(f"v_cvt_pk_bf16_f32 v{dst}, v{src}, 0")
    a.I(f"v_lshlrev_b32 v{dst}, 16, v{dst}")

def masked(a, c, cond_lt, body, name="m"):
    lab = c.lab("skip_" + name)
    a.I(f"v_cmp_gt_u32 vcc, {cond_lt}, v0")
    a.I(f"s_and_saveexec_b64 s[{S_EX}:{S_EX+1}], vcc")
    a.I(f"s_cbranch_execz {lab}")
    body()
    a.L(lab)
    a.I(f"s_mov_b64 exec, -1")

def masked_range(a, c, lo, hi, tmp, body, name="mr"):
    lab = c.lab("skip_" + name)
    a.I(f"v_subrev_u32 v{tmp}, {lo}, v0")
    a.I(f"v_cmp_gt_u32 vcc, {hi-lo}, v{tmp}")
    a.I(f"s_and_saveexec_b64 s[{S_EX}:{S_EX+1}], vcc")
    a.I(f"s_cbranch_execz {lab}")
    body()
    a.L(lab)
    a.I(f"s_mov_b64 exec, -1")

def barrier(a):
    a.I("s_waitcnt lgkmcnt(0)")
    a.I("s_barrier")

def dot_slab(a, data, clo, chi, acc, first):
    for j in range(4):
        s2a = "0" if first else f"v{acc+2*j}"
        s2b = "0" if first else f"v{acc+2*j+1}"
        a.I(f"v_dot2_f32_bf16 v{acc+2*j}, v{data+j}, v{clo}, {s2a}")
        a.I(f"v_dot2_f32_bf16 v{acc+2*j+1}, v{data+j}, v{chi}, {s2b}")

def sum_chain(a, dst, regs):
    a.I(f"v_add_f32 v{dst}, v{regs[0]}, v{regs[1]}")
    for r in regs[2:]:
        a.I(f"v_add_f32 v{dst}, v{dst}, v{r}")

def store_granule(a, c, g4, voff, soff):
    a.I(f"v_mov_b32 v{g4+2}, s{S_TAG}")
    a.I(f"v_mov_b32 v{g4+3}, s{S_TAG+1}")
    a.I(f"buffer_store_dwordx4 {vr(g4,4)}, v{voff}, {sr(SRD_WS)}, {soff} offen{c.stmod}")

D_WQ, D_GU, D_K, D_V, D_WO, D_WD = 16, 24, 44, 60, 76, 84

def issue_x(a):   a.I(f"v_lshlrev_b32 v5, 1, v0\nbuffer_load_ushort v15, v5, {sr(SRD_X)}, 0 offen")
def issue_wq(a):
    a.I(f"""
    v_lshrrev_b32 v5, 3, v0
    v_and_b32 v6, 7, v0
    v_lshlrev_b32 v5, 13, v5
    v_lshl_add_u32 v5, v6, 4, v5
    buffer_load_dwordx4 {vr(D_WQ,4)}, v5, {sr(SRD_WQ)}, 0 offen
    buffer_load_dwordx4 {vr(D_WQ+4,4)}, v5, {sr(SRD_WQ)}, s{S_OFFQ2} offen
    """)
def issue_gu(a):
    a.I(f"""
    v_mul_u32_u24 v5, 9216, v{V_RG}
    v_lshl_add_u32 v5, v{V_CH}, 4, v5
    buffer_load_dwordx4 {vr(D_GU,4)}, v5, {sr(SRD_GU)}, 0 offen
    """)
    for i in range(1, 5):
        a.I(f"buffer_load_dwordx4 {vr(D_GU+4*i,4)}, v5, {sr(SRD_GU)}, s{S_OFF8+i} offen")
def issue_kv(a, which):
    base, srd = (D_K, SRD_K) if which == "K" else (D_V, SRD_V)
    a.I(f"""
    v_lshrrev_b32 v5, 6, v0
    v_lshlrev_b32 v5, 12, v5
    v_lshl_add_u32 v5, v{V_LANE}, 4, v5
    """)
    for i in range(4):
        a.I(f"buffer_load_dwordx4 {vr(base+4*i,4)}, v5, {sr(srd)}, 0 offen" + (f" offset:{1024*i}" if i else ""))
def issue_wo(a):
    a.I(f"buffer_load_dwordx4 {vr(D_WO,4)}, v{V_T16}, {sr(SRD_WO)}, 0 offen")
    a.I(f"buffer_load_dwordx4 {vr(D_WO+4,4)}, v{V_T16}, {sr(SRD_WO)}, s{S_OFFR} offen")
def issue_wd(a):
    a.I(f"buffer_load_dwordx4 {vr(D_WD,4)}, v{V_T16}, {sr(SRD_WD)}, 0 offen")
    a.I(f"buffer_load_dwordx4 {vr(D_WD+4,4)}, v{V_T16}, {sr(SRD_WD)}, s{S_OFFR} offen")
    a.I(f"buffer_load_dwordx4 {vr(D_WD+8,4)}, v{V_T16}, {sr(SRD_WD)}, s{S_OFFR+1} offen")

def ln_stage(a, c, wait_x):
    XF, A_, B_, Z = 96, 97, 98, 99
    R0 = 100
    MEAN, VAR, D_ = 112, 113, 114
    a.C("layernorm")
    a.I(wait_x)
    a.I(f"""
    v_lshlrev_b32 v{XF}, 16, v15
    v_mov_b32 v{Z}, 0
    v_mov_b32 v{A_}, v{XF}
    """)
    def wg_sum(red, dst):
        wave_reduce_to63(a, A_)
        a.I(f"""
        v_readlane_b32 s{S_T0}, v{A_}, 63
        s_lshl_b32 s{S_T1}, s{S_WAVE}, 2
        v_mov_b32 v{B_}, s{S_T0}
        v_mov_b32 v{A_}, s{S_T1}
        ds_write_b32 v{A_}, v{B_} offset:{red}
        """)
        barrier(a)
        a.I(f"""
        ds_read_b128 {vr(R0,4)}, v{Z} offset:{red}
        ds_read_b128 {vr(R0+4,4)}, v{Z} offset:{red+16}
        ds_read_b32 v{R0+8}, v{Z} offset:{red+32}
        s_waitcnt lgkmcnt(0)
        """)
        sum_chain(a, dst, list(range(R0, R0 + 9)))
        a.I(f"v_mul_f32 v{dst}, {f32bits(1.0/576.0):#x}, v{dst}")
    a.I(f"""
    v_lshlrev_b32 v{B_}, 2, v{V_LANE}
    ds_write_b32 v{B_}, v{Z} offset:{XNBUF + 576*4}
    """)
    wg_sum(LN_RED1, MEAN)
    a.I(f"""
    v_sub_f32 v{D_}, v{XF}, v{MEAN}
    v_mul_f32 v{A_}, v{D_}, v{D_}
    """)
    wg_sum(LN_RED2, VAR)
    MB, T1, DEN, XC, RC, Q0, E_ = 100, 101, 102, 103, 104, 105, 106
    round_bf16(a, MB, MEAN)
    round_bf16(a, T1, VAR)
    a.I(f"v_add_f32 v{T1}, {f32bits(1e-5):#x}, v{T1}")
    round_bf16(a, T1, T1)
    a.I(f"v_sqrt_f32 v{DEN}, v{T1}")
    round_bf16(a, DEN, DEN)
    a.I(f"v_sub_f32 v{XC}, v{XF}, v{MB}")
    round_bf16(a, XC, XC)
    a.I(f"""
    v_rcp_f32 v{RC}, v{DEN}
    v_mul_f32 v{Q0}, v{XC}, v{RC}
    v_fma_f32 v{E_}, -v{Q0}, v{DEN}, v{XC}
    v_fma_f32 v{Q0}, v{E_}, v{RC}, v{Q0}
    """)
    to_bf16_lo(a, Q0, Q0)
    a.I(f"""
    v_lshlrev_b32 v{E_}, 2, v0
    ds_write_b32 v{E_}, v{Q0} offset:{XNBUF}
    """)
    barrier(a)

def reduce8_inwave(a, acc):
    for k in range(4): a.I(f"v_permlane32_swap_b32 v{acc+2*k}, v{acc+2*k+1}")
    for k in range(4): a.I(f"v_add_f32 v{acc+2*k}, v{acc+2*k}, v{acc+2*k+1}")
    for m in range(2): a.I(f"v_permlane16_swap_b32 v{acc+4*m}, v{acc+4*m+2}")
    for m in range(2): a.I(f"v_add_f32 v{acc+4*m}, v{acc+4*m}, v{acc+4*m+2}")
    for m in range(2): a.I(f"v_add_f32 v{acc+4*m}, v{acc+4*m}, v{acc+4*m} row_ror:8")

def phaseA_q(a, c, waits):
    CL0, CL1, CH0, CH1, AD = 96, 97, 98, 99, 100
    ACC = 104
    a.C("q slab")
    a.I(f"""
    v_lshrrev_b32 v{AD}, 3, v0
    v_lshlrev_b32 v{AD}, 2, v{AD}
    s_mul_i32 s{S_T0}, s{S_KQ}, 576
    v_add_u32 v{AD}, s{S_T0}, v{AD}
    ds_read_b32 v{CL0}, v{AD} offset:{XNBUF}
    ds_read_b32 v{CL1}, v{AD} offset:{XNBUF+288}
    s_waitcnt lgkmcnt(0)
    v_lshlrev_b32 v{CH0}, 16, v{CL0}
    v_lshlrev_b32 v{CH1}, 16, v{CL1}
    """)
    a.I(waits[0]); dot_slab(a, D_WQ, CL0, CH0, ACC, True)
    a.I(waits[1]); dot_slab(a, D_WQ + 4, CL1, CH1, ACC, False)
    reduce8_inwave(a, ACC)
    a.I(f"""
    v_lshrrev_b32 v{CL0}, 4, v{V_LANE}
    v_and_b32 v{CL1}, 1, v{CL0}
    v_lshlrev_b32 v{CL1}, 3, v{CL1}
    v_lshrrev_b32 v{CL0}, 1, v{CL0}
    v_lshl_add_u32 v{CL1}, v{CL0}, 2, v{CL1}
    v_and_b32 v{CL0}, 7, v{V_LANE}
    v_lshl_add_u32 v{CL1}, v{CL0}, 5, v{CL1}
    s_lshl_b32 s{S_T0}, s{S_WAVE}, 8
    v_add_u32 v{CL1}, s{S_T0}, v{CL1}
    ds_write_b32 v{CL1}, v{ACC} offset:{QPART}
    ds_write_b32 v{CL1}, v{ACC+4} offset:{QPART+16}
    """)

def phaseA_gu(a, c, waits):
    CL, CH, AD = 96, 101, 106
    ACC = 112
    a.C("gate/up slab")
    a.I(f"""
    s_mul_i32 s{S_T0}, s{S_S}, 144
    v_lshlrev_b32 v{AD}, 2, v{V_RG}
    v_add_u32 v{AD}, s{S_T0}, v{AD}
    """)
    for i in range(5): a.I(f"ds_read_b32 v{CL+i}, v{AD} offset:{XNBUF+32*i}")
    a.I("s_waitcnt lgkmcnt(0)")
    for i in range(5): a.I(f"v_lshlrev_b32 v{CH+i}, 16, v{CL+i}")
    for i in range(5):
        a.I(waits[i]); dot_slab(a, D_GU + 4 * i, CL + i, CH + i, ACC, i == 0)
    a.I(f"""
    v_mul_u32_u24 v{AD}, 2304, v{V_RG}
    v_lshl_add_u32 v{AD}, v{V_CH}, 5, v{AD}
    ds_write_b128 v{AD}, {vr(ACC,4)} offset:{GUPART}
    ds_write_b128 v{AD}, {vr(ACC+4,4)} offset:{GUPART+16}
    """)

def phaseA_publish_q(a, c):
    G = 96; R = 100
    def body():
        a.I(f"v_lshlrev_b32 v5, 3, v0")
        for wv in range(9):
            a.I(f"ds_read_b64 {vr(R+2*wv,2)}, v5 offset:{QPART+256*wv}")
        a.I("s_waitcnt lgkmcnt(0)")
        sum_chain(a, G, [R + 2 * wv for wv in range(9)])
        sum_chain(a, G + 1, [R + 2 * wv + 1 for wv in range(9)])
        a.I(f"s_lshl_b32 s{S_T0}, s2, 9")
        if R1: a.I(f"s_add_u32 s{S_T0}, s{S_T0}, {R1}")
        store_granule(a, c, G, V_T16, f"s{S_T0}")
    masked(a, c, 32, body, "pubq")

def phaseA_publish_gu(a, c):
    G = 96; R = 100; TP = 6
    def body():
        a.I(f"v_lshlrev_b32 v5, 3, v{TP}")
        for rg in range(8):
            a.I(f"ds_read_b64 {vr(R+2*rg,2)}, v5 offset:{GUPART+2304*rg}")
        a.I("s_waitcnt lgkmcnt(0)")
        sum_chain(a, G, [R + 2 * rg for rg in range(8)])
        sum_chain(a, G + 1, [R + 2 * rg + 1 for rg in range(8)])
        a.I(f"s_mul_i32 s{S_T0}, s2, 4608\ns_add_u32 s{S_T0}, s{S_T0}, {R2}")
        a.I(f"v_lshlrev_b32 v5, 4, v{TP}")
        store_granule(a, c, G, 5, f"s{S_T0}")
    masked_range(a, c, 64, 352, TP, body, "pubgu")

def phaseB_gather_q(a, c):
    G = 96
    def body():
        a.I(f"""
        v_lshrrev_b32 v5, 5, v0
        v_lshlrev_b32 v5, 11, v5
        v_and_b32 v6, 31, v0
        v_lshl_add_u32 v5, v6, 4, v5
        s_lshl_b32 s{S_T0}, s{S_G}, 13
        """)
        if R1: a.I(f"s_add_u32 s{S_T0}, s{S_T0}, {R1}")
        for k in range(4):
            a.I(f"buffer_load_dwordx4 {vr(G+4*k,4)}, v5, {sr(SRD_WS)}, s{S_T0} offen" + (f" offset:{512*k}" if k else "") + c.ldmod)
        a.I("s_waitcnt vmcnt(0)")
        sum_chain(a, G, [G, G + 4, G + 8, G + 12])
        sum_chain(a, G + 1, [G + 1, G + 5, G + 9, G + 13])
        a.I(f"""
        v_cvt_pk_bf16_f32 v{G}, v{G}, v{G+1}
        v_lshlrev_b32 v5, 2, v0
        ds_write_b32 v5, v{G} offset:{QBUF}
        """)
    masked(a, c, 128, body, "gq")

def reduce16_inwave(a, acc):
    for k in range(8): a.I(f"v_permlane32_swap_b32 v{acc+2*k}, v{acc+2*k+1}")
    for k in range(8): a.I(f"v_add_f32 v{acc+2*k}, v{acc+2*k}, v{acc+2*k+1}")
    for m in range(4): a.I(f"v_permlane16_swap_b32 v{acc+4*m}, v{acc+4*m+2}")
    for m in range(4): a.I(f"v_add_f32 v{acc+4*m}, v{acc+4*m}, v{acc+4*m+2}")

def phaseB_attn(a, c, waitK, waitV):
    lab = c.lab("skip_attn")
    Q0, Q1 = 96, 100
    SC = 104
    P_LO, P_HI = 112, 120
    ACC = 128
    MX0, MX1, CC, MC0, MC1, L0, L1, T = 144, 145, 146, 147, 148, 149, 150, 151
    ST4 = 152
    a.C("attention: scores / softmax / PV for 16 keys per wave")
    a.I(f"s_cmp_ge_u32 s{S_WAVE}, 8\ns_cbranch_scc1 {lab}")
    a.I(f"""
    v_and_b32 v5, 15, v{V_LANE}
    v_lshlrev_b32 v5, 4, v5
    ds_read_b128 {vr(Q0,4)}, v5 offset:{QBUF}
    ds_read_b128 {vr(Q1,4)}, v5 offset:{QBUF+256}
    v_mov_b32 v{CC}, s{S_C}
    s_waitcnt lgkmcnt(0)
    """)
    a.I(waitK)
    for i in range(4):
        for h, q in ((0, Q0), (1, Q1)):
            for j in range(4):
                s2 = "0" if j == 0 else f"v{SC+h*4+i}"
                a.I(f"v_dot2_f32_bf16 v{SC+h*4+i}, v{D_K+4*i+j}, v{q+j}, {s2}")
    row_allreduce(a, [SC + k for k in range(8)])
    for h, mx, sm, mc in ((0, MX0, S_M0, MC0), (1, MX1, S_M1, MC1)):
        a.I(f"v_max3_f32 v{mx}, v{SC+4*h}, v{SC+4*h+1}, v{SC+4*h+2}")
        a.I(f"v_max_f32 v{mx}, v{mx}, v{SC+4*h+3}")
    for mx in (MX0, MX1): a.I(f"v_max_f32 v{mx}, v{mx}, v{mx} row_bcast:15 row_mask:0xa")
    for mx in (MX0, MX1): a.I(f"v_max_f32 v{mx}, v{mx}, v{mx} row_bcast:31 row_mask:0xc")
    a.I(f"v_readlane_b32 s{S_M0}, v{MX0}, 63\nv_readlane_b32 s{S_M1}, v{MX1}, 63")
    a.I(f"v_mul_f32 v{MC0}, s{S_M0}, v{CC}\nv_mul_f32 v{MC1}, s{S_M1}, v{CC}")
    for h, mc in ((0, MC0), (1, MC1)):
        for i in range(4):
            a.I(f"v_fma_f32 v{SC+4*h+i}, v{SC+4*h+i}, v{CC}, -v{mc}")
    for k in range(8): a.I(f"v_exp_f32 v{SC+k}, v{SC+k}")
    for k in range(8):
        a.I(f"v_cvt_pk_bf16_f32 v{P_LO+k}, v{SC+k}, 0")
        a.I(f"v_cvt_pk_bf16_f32 v{P_HI+k}, 0, v{SC+k}")
    for h, l in ((0, L0), (1, L1)):
        sum_chain(a, l, [SC + 4 * h + i for i in range(4)])
    for l in (L0, L1): a.I(f"v_add_f32 v{l}, v{l}, v{l} row_bcast:15 row_mask:0xa")
    for l in (L0, L1): a.I(f"v_add_f32 v{l}, v{l}, v{l} row_bcast:31 row_mask:0xc")
    a.I(waitV)
    for i in range(4):
        for h in range(2):
            for j in range(4):
                A0 = ACC + 8 * h + 2 * j
                a.I(f"v_dot2_f32_bf16 v{A0}, v{D_V+4*i+j}, v{P_LO+4*h+i}, " + ("0" if i == 0 else f"v{A0}"))
                a.I(f"v_dot2_f32_bf16 v{A0+1}, v{D_V+4*i+j}, v{P_HI+4*h+i}, " + ("0" if i == 0 else f"v{A0+1}"))
    reduce16_inwave(a, ACC)
    a.I(f"""
    s_lshl_b32 s{S_T0}, s{S_WAVE}, 10
    v_lshlrev_b32 v5, 2, v{V_LANE}
    v_add_u32 v5, s{S_T0}, v5
    """)
    for m in range(4): a.I(f"ds_write_b32 v5, v{ACC+4*m} offset:{OBUF+256*m}")
    a.I(f"""
    v_mov_b32 v{ST4}, v{MC0}
    v_mov_b32 v{ST4+1}, v{L0}
    v_mov_b32 v{ST4+2}, v{MC1}
    v_mov_b32 v{ST4+3}, v{L1}
    s_lshl_b32 s{S_T0}, s{S_WAVE}, 4
    v_mov_b32 v5, s{S_T0}
    s_mov_b32 exec_lo, 0
    s_mov_b32 exec_hi, 0x80000000
    ds_write_b128 v5, {vr(ST4,4)} offset:{STATS}
    s_mov_b64 exec, -1
    """)
    a.L(lab)

def phaseB_merge_publish(a, c):
    SM = 96
    F = 112
    OA, OB = 120, 128
    G = 136
    MC, LL, T = 140, 141, 142
    GS = 144
    def body():
        a.I(f"""
        v_lshrrev_b32 v5, 6, v0
        v_lshlrev_b32 v5, 3, v5
        """)
        for wv in range(8): a.I(f"ds_read_b64 {vr(SM+2*wv,2)}, v5 offset:{STATS+16*wv}")
        a.I(f"""
        v_lshrrev_b32 v6, 5, v0
        v_lshlrev_b32 v6, 8, v6
        v_bfe_u32 v7, v0, 4, 1
        v_lshl_add_u32 v6, v7, 6, v6
        v_and_b32 v7, 15, v0
        v_lshl_add_u32 v6, v7, 2, v6
        """)
        for wv in range(8):
            a.I(f"ds_read_b32 v{OA+wv}, v6 offset:{OBUF+1024*wv}")
            a.I(f"ds_read_b32 v{OB+wv}, v6 offset:{OBUF+1024*wv+128}")
        a.I("s_waitcnt lgkmcnt(0)")
        mcs = [SM + 2 * wv for wv in range(8)]; ls = [SM + 2 * wv + 1 for wv in range(8)]
        a.I(f"v_max3_f32 v{MC}, v{mcs[0]}, v{mcs[1]}, v{mcs[2]}")
        a.I(f"v_max3_f32 v{MC}, v{MC}, v{mcs[3]}, v{mcs[4]}")
        a.I(f"v_max3_f32 v{MC}, v{MC}, v{mcs[5]}, v{mcs[6]}")
        a.I(f"v_max_f32 v{MC}, v{MC}, v{mcs[7]}")
        for wv in range(8): a.I(f"v_sub_f32 v{F+wv}, v{mcs[wv]}, v{MC}")
        for wv in range(8): a.I(f"v_exp_f32 v{F+wv}, v{F+wv}")
        a.I(f"v_mul_f32 v{LL}, v{F}, v{ls[0]}")
        a.I(f"v_mul_f32 v{G}, v{F}, v{OA}")
        a.I(f"v_mul_f32 v{G+1}, v{F}, v{OB}")
        for wv in range(1, 8):
            a.I(f"v_fmac_f32 v{LL}, v{F+wv}, v{ls[wv]}")
            a.I(f"v_fmac_f32 v{G}, v{F+wv}, v{OA+wv}")
            a.I(f"v_fmac_f32 v{G+1}, v{F+wv}, v{OB+wv}")
        a.I(f"""
        v_lshrrev_b32 v5, 6, v0
        v_lshlrev_b32 v5, 3, v5
        v_bfe_u32 v6, v0, 1, 3
        v_add_u32 v5, v5, v6
        v_lshlrev_b32 v5, 11, v5
        v_and_b32 v6, 1, v0
        v_lshl_add_u32 v5, v6, 6, v5
        v_bfe_u32 v6, v0, 5, 1
        v_lshl_add_u32 v5, v6, 5, v5
        v_bfe_u32 v6, v0, 4, 1
        v_lshl_add_u32 v5, v6, 4, v5
        s_lshl_b32 s{S_T0}, s{S_G}, 15
        s_lshl_b32 s{S_T1}, s{S_S}, 7
        s_add_u32 s{S_T0}, s{S_T0}, s{S_T1}
        s_add_u32 s{S_T0}, s{S_T0}, {R3}
        """)
        store_granule(a, c, G, 5, f"s{S_T0}")
        lab = c.lab("skip_pst")
        a.I(f"""
        v_and_b32 v6, 63, v0
        v_cmp_eq_u32 vcc, 0, v6
        s_and_saveexec_b64 s[14:15], vcc
        s_cbranch_execz {lab}
        v_mov_b32 v{GS}, v{MC}
        v_mov_b32 v{GS+1}, v{LL}
        v_lshrrev_b32 v5, 6, v0
        v_lshlrev_b32 v5, 4, v5
        s_lshl_b32 s{S_T0}, s2, 5
        s_add_u32 s{S_T0}, s{S_T0}, {R3S}
        """)
        store_granule(a, c, GS, 5, f"s{S_T0}")
        a.L(lab)
    masked(a, c, 128, body, "mrg")

def phaseC_gather(a, c):
    G = 96
    def body_o():
        a.I(f"""
        s_lshl_b32 s{S_T0}, s{S_G}, 15
        s_lshl_b32 s{S_T1}, s{S_S}, 11
        s_add_u32 s{S_T0}, s{S_T0}, s{S_T1}
        s_add_u32 s{S_T0}, s{S_T0}, {R3}
        buffer_load_dwordx4 {vr(G,4)}, v{V_T16}, {sr(SRD_WS)}, s{S_T0} offen{c.ldmod}
        v_lshlrev_b32 v5, 3, v0
        s_waitcnt vmcnt(0)
        ds_write_b64 v5, {vr(G,2)} offset:{OG}
        """)
    masked(a, c, 128, body_o, "go")
    def body_s():
        a.I(f"""
        s_lshl_b32 s{S_T0}, s{S_G}, 9
        s_lshr_b32 s{S_T1}, s{S_S}, 3
        s_lshl_b32 s{S_T1}, s{S_T1}, 4
        s_add_u32 s{S_T0}, s{S_T0}, s{S_T1}
        s_add_u32 s{S_T0}, s{S_T0}, {R3S}
        v_lshlrev_b32 v5, 5, v6
        buffer_load_dwordx4 {vr(G,4)}, v5, {sr(SRD_WS)}, s{S_T0} offen{c.ldmod}
        v_lshlrev_b32 v5, 3, v6
        s_waitcnt vmcnt(0)
        ds_write_b64 v5, {vr(G,2)} offset:{ST}
        """)
    masked_range(a, c, 128, 144, 6, body_s, "gs")
    def body_g():
        a.I(f"""
        v_mul_u32_u24 v7, 7282, v6
        v_lshrrev_b32 v7, 16, v7
        v_mul_u32_u24 v8, 9, v7
        v_sub_u32 v8, v6, v8
        v_lshrrev_b32 v9, 4, v7
        v_and_b32 v10, 15, v7
        v_lshlrev_b32 v9, 7, v9
        v_add_u32 v9, v9, v10
        v_mul_u32_u24 v9, 288, v9
        v_add_u32 v9, v9, v8
        v_lshlrev_b32 v9, 4, v9
        s_lshr_b32 s{S_T0}, s2, 5
        s_mul_i32 s{S_T0}, s{S_T0}, {16*288*16}
        s_and_b32 s{S_T1}, s2, 31
        s_mul_i32 s{S_T1}, s{S_T1}, 144
        s_add_u32 s{S_T0}, s{S_T0}, s{S_T1}
        s_add_u32 s{S_T0}, s{S_T0}, {R2}
        buffer_load_dwordx4 {vr(G,4)}, v9, {sr(SRD_WS)}, s{S_T0} offen{c.ldmod}
        v_lshlrev_b32 v5, 3, v6
        s_waitcnt vmcnt(0)
        ds_write_b64 v5, {vr(G,2)} offset:{GG}
        """)
    masked_range(a, c, 192, 480, 6, body_g, "gg")

def phaseC_combine(a, c):
    lab0 = c.lab("skip_oc")
    S2, F, LS, O4, M, T = 96, 98, 99, 100, 104, 105
    a.I(f"s_cmp_lg_u32 s{S_WAVE}, 0\ns_cbranch_scc1 {lab0}")
    a.I(f"""
    v_and_b32 v5, 15, v{V_LANE}
    v_lshlrev_b32 v6, 3, v5
    ds_read_b64 {vr(S2,2)}, v6 offset:{ST}
    v_lshlrev_b32 v6, 6, v5
    v_lshrrev_b32 v7, 4, v{V_LANE}
    v_lshl_add_u32 v6, v7, 4, v6
    ds_read_b128 {vr(O4,4)}, v6 offset:{OG}
    s_waitcnt lgkmcnt(0)
    v_mov_b32 v{M}, v{S2}
    """)
    row_allreduce(a, [M], "v_max_f32")
    a.I(f"""
    v_sub_f32 v{F}, v{S2}, v{M}
    v_exp_f32 v{F}, v{F}
    v_mul_f32 v{LS}, v{F}, v{S2+1}
    """)
    for k in range(4): a.I(f"v_mul_f32 v{O4+k}, v{O4+k}, v{F}")
    row_allreduce(a, [LS, O4, O4 + 1, O4 + 2, O4 + 3])
    a.I(f"v_rcp_f32 v{T}, v{LS}")
    for k in range(4): a.I(f"v_mul_f32 v{O4+k}, v{O4+k}, v{T}")
    for k in range(4): to_bf16_lo(a, O4 + k, O4 + k)
    a.I(f"""
    v_lshlrev_b32 v6, 4, v7
    ds_write_b128 v6, {vr(O4,4)} offset:{COEFO}
    v_mov_b32 v{T}, 0
    v_and_b32 v6, 7, v5
    v_lshlrev_b32 v6, 2, v6
    ds_write_b32 v6, v{T} offset:{COEFH+72}
    """)
    a.L(lab0)

def phaseC_hcombine(a, c):
    Gv, Uv, T, E = 96, 97, 98, 99
    def body():
        a.I(f"""
        v_lshrrev_b32 v7, 4, v6
        v_and_b32 v8, 15, v6
        v_mul_u32_u24 v8, 72, v8
        v_lshl_add_u32 v8, v7, 2, v8
        ds_read_b32 v{Gv}, v8 offset:{GG}
        ds_read_b32 v{Uv}, v8 offset:{GG+1152}
        s_waitcnt lgkmcnt(0)
        """)
        row_allreduce(a, [Gv, Uv])
        round_bf16(a, Gv, Gv)
        round_bf16(a, Uv, Uv)
        a.I(f"""
        v_mul_f32 v{E}, {f32bits(-LOG2E):#x}, v{Gv}
        v_exp_f32 v{E}, v{E}
        v_add_f32 v{E}, 1.0, v{E}
        v_rcp_f32 v{E}, v{E}
        v_mul_f32 v{T}, v{Gv}, v{E}
        """)
        round_bf16(a, T, T)
        a.I(f"v_mul_f32 v{T}, v{T}, v{Uv}")
        to_bf16_lo(a, T, T)
        a.I(f"""
        v_lshlrev_b32 v8, 2, v7
        ds_write_b32 v8, v{T} offset:{COEFH}
        """)
    masked_range(a, c, 64, 352, 6, body, "hc")

def phaseC_slabs(a, c, waitsO, waitsD):
    CO, CD, HO, HD, AD = 96, 98, 101, 103, 106
    AS, AY = 112, 120
    a.I(f"v_lshlrev_b32 v{AD}, 2, v{V_RG}")
    for i in range(2): a.I(f"ds_read_b32 v{CO+i}, v{AD} offset:{COEFO+32*i}")
    for i in range(3): a.I(f"ds_read_b32 v{CD+i}, v{AD} offset:{COEFH+32*i}")
    a.I("s_waitcnt lgkmcnt(0)")
    for i in range(2): a.I(f"v_lshlrev_b32 v{HO+i}, 16, v{CO+i}")
    for i in range(3): a.I(f"v_lshlrev_b32 v{HD+i}, 16, v{CD+i}")
    for i in range(2):
        a.I(waitsO[i]); dot_slab(a, D_WO + 4 * i, CO + i, HO + i, AS, i == 0)
    for i in range(3):
        a.I(waitsD[i]); dot_slab(a, D_WD + 4 * i, CD + i, HD + i, AY, i == 0)
    a.I(f"""
    v_mul_u32_u24 v{AD}, 2304, v{V_RG}
    v_lshl_add_u32 v{AD}, v{V_CH}, 5, v{AD}
    ds_write_b128 v{AD}, {vr(AS,4)} offset:{PS}
    ds_write_b128 v{AD}, {vr(AS+4,4)} offset:{PS+16}
    ds_write_b128 v{AD}, {vr(AY,4)} offset:{PY}
    ds_write_b128 v{AD}, {vr(AY+4,4)} offset:{PY+16}
    """)

def phaseC_publish(a, c):
    G = 96; R = 100
    a.I(f"v_lshlrev_b32 v5, 2, v0")
    a.I(f"v_add_u32 v6, {PY}, v5")
    for rg in range(8): a.I(f"ds_read_b32 v{R+rg}, v5 offset:{PS+2304*rg}")
    for rg in range(8): a.I(f"ds_read_b32 v{R+8+rg}, v6 offset:{2304*rg}")
    a.I("s_waitcnt lgkmcnt(0)")
    sum_chain(a, G, [R + rg for rg in range(8)])
    sum_chain(a, G + 1, [R + 8 + rg for rg in range(8)])
    a.I(f"""
    v_mul_u32_u24 v5, 7282, v0
    v_lshrrev_b32 v5, 16, v5
    v_mul_u32_u24 v6, 9, v5
    v_sub_u32 v6, v0, v6
    v_mul_u32_u24 v5, 36864, v5
    v_lshl_add_u32 v5, v6, 4, v5
    s_mul_i32 s{S_T0}, s2, 144
    s_add_u32 s{S_T0}, s{S_T0}, {R4}
    """)
    store_granule(a, c, G, 5, f"s{S_T0}")

def phaseD(a, c):
    lab = c.lab("skip_final")
    G = 96
    a.I(f"s_cmp_ge_u32 s2, 64\ns_cbranch_scc1 {lab}")
    a.I(f"s_mul_i32 s{S_T0}, s2, 36864\ns_add_u32 s{S_T0}, s{S_T0}, {R4}")
    for k in range(4):
        a.I(f"s_add_u32 s{S_T1}, s{S_T0}, {9216*k}")
        a.I(f"buffer_load_dwordx4 {vr(G+4*k,4)}, v{V_T16}, {sr(SRD_WS)}, s{S_T1} offen{c.ldmod}")
    a.I(f"""
    s_mul_i32 s{S_T1}, s2, 9
    s_add_u32 s{S_T1}, s{S_T1}, s{S_WAVE}
    s_lshl_b32 s{S_T1}, s{S_T1}, 1
    v_mov_b32 v7, s{S_T1}
    buffer_load_ushort v15, v7, {sr(SRD_X)}, 0 offen
    v_lshlrev_b32 v5, 3, v0
    v_add_u32 v5, {FB}, v5
    s_waitcnt vmcnt(1)
    """)
    for k in range(4): a.I(f"ds_write_b64 v5, {vr(G+4*k,2)} offset:{4608*k}")
    barrier(a)
    a.I(f"""
    v_mul_u32_u24 v5, 72, v{V_LANE}
    s_lshl_b32 s{S_T1}, s{S_WAVE}, 3
    s_add_u32 s{S_T1}, s{S_T1}, {FB}
    v_add_u32 v5, s{S_T1}, v5
    """)
    for k in range(4): a.I(f"ds_read_b64 {vr(G+2*k,2)}, v5 offset:{4608*k}")
    a.I("s_waitcnt lgkmcnt(0)")
    SS, YY, T, E = 112, 113, 114, 115
    sum_chain(a, SS, [G, G + 2, G + 4, G + 6])
    sum_chain(a, YY, [G + 1, G + 3, G + 5, G + 7])
    for sh in (1, 2, 4, 8):
        a.I(f"v_add_f32 v{SS}, v{SS}, v{SS} row_shr:{sh}")
        a.I(f"v_add_f32 v{YY}, v{YY}, v{YY} row_shr:{sh}")
    for r in (SS, YY): a.I(f"v_add_f32 v{r}, v{r}, v{r} row_bcast:15 row_mask:0xa")
    for r in (SS, YY): a.I(f"v_add_f32 v{r}, v{r}, v{r} row_bcast:31 row_mask:0xc")
    round_bf16(a, SS, SS)
    round_bf16(a, YY, YY)
    a.I(f"""
    v_mul_f32 v{E}, {f32bits(-LOG2E):#x}, v{YY}
    v_exp_f32 v{E}, v{E}
    v_add_f32 v{E}, 1.0, v{E}
    v_rcp_f32 v{E}, v{E}
    v_mul_f32 v{T}, v{YY}, v{E}
    """)
    round_bf16(a, T, T)
    a.I(f"v_mul_f32 v{T}, v{SS}, v{T}")
    round_bf16(a, T, T)
    a.I(f"""
    s_waitcnt vmcnt(0)
    v_lshlrev_b32 v{E}, 16, v15
    v_add_f32 v{T}, v{E}, v{T}
    """)
    to_bf16_lo(a, T, T)
    a.I(f"""
    s_mov_b32 exec_lo, 0
    s_mov_b32 exec_hi, 0x80000000
    buffer_store_short v{T}, v7, {sr(SRD_OUT)}, 0 offen
    s_mov_b64 exec, -1
    """)
    a.L(lab)
```

```python
import sys
sys.path.insert(0, "gen")
from asmlib import Asm
from phases import *

REF = open("recurrent_scan__sliding_block_cached__swiglu_ffn__decode.s.ref").read()
HEADER = "\n".join(l for l in REF.split(".amdgcn_target")[0].splitlines() if l.startswith(";") and "@launch" not in l and "Override" not in l and "grid=ceil" not in l)

def kd(name, vgpr=168, sgpr=96):
    return f""".amdhsa_kernel {name}
  .amdhsa_next_free_vgpr {vgpr}
  .amdhsa_next_free_sgpr {sgpr}
  .amdhsa_accum_offset {vgpr}
  .amdhsa_group_segment_fixed_size 0
  .amdhsa_kernarg_size 96
  .amdhsa_user_sgpr_count 2
  .amdhsa_user_sgpr_kernarg_segment_ptr 1
  .amdhsa_system_sgpr_workgroup_id_x 1
.end_amdhsa_kernel
"""

def kernel(name, body):
    a = Asm(); c = Ctx()
    c.nlabel = {"phasea_kernel": 0, "phaseb_kernel": 1000, "phasec_kernel": 2000, "phased_kernel": 3000}.get(name, 0)
    a.raw(f".globl {name}\n.p2align 8\n.type {name},@function\n{name}:")
    ex = f"L_exit_{name}"
    prologue(a, c, ex)
    a.I(f"s_mov_b32 s{S_TAG}, 0\ns_mov_b32 s{S_TAG+1}, 0")
    body(a, c)
    a.L(ex)
    a.I("s_endpgm")
    return a.render()

def bodyA(a, c):
    issue_x(a); issue_wq(a); issue_gu(a)
    ln_stage(a, c, "s_waitcnt vmcnt(7)")
    phaseA_q(a, c, ["s_waitcnt vmcnt(6)", "s_waitcnt vmcnt(5)"])
    phaseA_gu(a, c, [f"s_waitcnt vmcnt({4-i})" for i in range(5)])
    barrier(a)
    phaseA_publish_q(a, c)
    phaseA_publish_gu(a, c)

def bodyB(a, c):
    issue_kv(a, "K"); issue_kv(a, "V")
    phaseB_gather_q(a, c)
    barrier(a)
    phaseB_attn(a, c, "s_waitcnt vmcnt(4)", "s_waitcnt vmcnt(0)")
    barrier(a)
    phaseB_merge_publish(a, c)

def bodyC(a, c):
    issue_wo(a); issue_wd(a)
    phaseC_gather(a, c)
    barrier(a)
    phaseC_combine(a, c)
    phaseC_hcombine(a, c)
    barrier(a)
    phaseC_slabs(a, c, ["s_waitcnt vmcnt(4)", "s_waitcnt vmcnt(3)"], ["s_waitcnt vmcnt(2)", "s_waitcnt vmcnt(1)", "s_waitcnt vmcnt(0)"])
    barrier(a)
    phaseC_publish(a, c)

def bodyD(a, c):
    phaseD(a, c)

out = HEADER + "\n"
names = ["phasea_kernel", "phaseb_kernel", "phasec_kernel", "phased_kernel"]
for n in names:
    out += f"; @launch kernel={n} grid=(256,1,1) block=(576,1,1) lds={LDS_BYTES}\n"
out += '.amdgcn_target "amdgcn-amd-amdhsa--gfx950"\n.text\n'
for n, b in zip(names, [bodyA, bodyB, bodyC, bodyD]):
    out += kernel(n, b)
out += '.section .rodata,"a"\n.p2align 6\n'
for n in names: out += kd(n)
open(sys.argv[1] if len(sys.argv) > 1 else "v1.s", "w").write(out)
```

```python
import struct
from asmlib import Asm

def f32bits(x): return struct.unpack("<I", struct.pack("<f", x))[0]
import math
SCALE_LOG2E = (128 ** -0.5) * math.log2(math.e)
LOG2E = math.log2(math.e)

NT = 576
LN_RED1, LN_RED2 = 0, 64
XNBUF = 128
QPART = 2816
GUPART = 5120
QBUF = 23552
OBUF = 24576
STATS = 32768
OG = 33024
ST = 34048
GG = 34304
COEFO = 36608
COEFH = 36672
PS = 36864
PY = 55296
FB = 73728
LDS_BYTES = 98304
R1 = 0x0
R2 = 0x20000
R3 = 0x140000
R3S = 0x1C0000
R4 = 0x200000
WS_BYTES = 268435456

S_G, S_S, S_CB, S_KQ = 3, 4, 5, 6
S_T0, S_T1, S_T2, S_T3 = 7, 8, 9, 10
S_EX = 12
SRD_X, SRD_WQ, SRD_K, SRD_V, SRD_GU, SRD_WO, SRD_WD, SRD_WS, SRD_OUT = 40, 44, 48, 52, 56, 60, 64, 68, 72
S_OFFQ2 = 76
S_OFF8 = 76
S_WAVE = 81
S_TAG = 82
S_M0, S_M1 = 84, 85
S_C = 86
S_TMPA, S_TMPB = 88, 89
S_OFFR = 90

def v(n): return f"v{n}"
def vr(n, k): return f"v[{n}:{n+k-1}]"
def s(n): return f"s{n}"
def sr(n, k=4): return f"s[{n}:{n+k-1}]"

class Ctx:
    def __init__(self):
        self.stmod = ""
        self.ldmod = ""
        self.nlabel = 0
    def lab(self, base):
        self.nlabel += 1
        return f"L_{base}_{self.nlabel}"

V_T, V_LANE, V_RG, V_CH, V_T16 = 0, 1, 2, 3, 4

def prologue(a, c, exit_label):
    a.C("prologue: workgroup ids, kernarg pointers, SRDs")
    a.I(f"""
    s_cmp_ge_u32 s2, 256
    s_cbranch_scc1 {exit_label}
    s_load_dwordx16 s[16:31], s[0:1], 0
    s_load_dwordx8 s[32:39], s[0:1], 64
    s_lshr_b32 s{S_G}, s2, 4
    s_and_b32 s{S_S}, s2, 15
    s_lshr_b32 s{S_CB}, s{S_S}, 2
    s_and_b32 s{S_KQ}, s{S_S}, 3
    v_and_b32 v{V_LANE}, 63, v0
    v_mul_u32_u24 v{V_RG}, 3641, v0
    v_lshrrev_b32 v{V_RG}, 18, v{V_RG}
    v_mul_u32_u24 v{V_CH}, 72, v{V_RG}
    v_sub_u32 v{V_CH}, v0, v{V_CH}
    v_lshlrev_b32 v{V_T16}, 4, v0
    v_lshrrev_b32 v5, 6, v0
    v_readfirstlane_b32 s{S_WAVE}, v5
    s_mov_b32 s{S_OFFQ2}, {72*8192}
    """)
    for i in range(1, 5):
        a.I(f"s_mov_b32 s{S_OFF8+i}, {8*i*9216}")
    a.I(f"s_mov_b32 s{S_C}, {f32bits(SCALE_LOG2E):#x}")
    a.I(f"s_mov_b32 s{S_OFFR}, 9216\ns_mov_b32 s{S_OFFR+1}, 18432")
    a.I("s_waitcnt lgkmcnt(0)")
    def srd(dst, plo, off_s, nrec):
        if off_s is None:
            a.I(f"s_mov_b32 s{dst}, s{plo}\ns_mov_b32 s{dst+1}, s{plo+1}")
        else:
            a.I(f"s_add_u32 s{dst}, s{plo}, s{off_s}\ns_addc_u32 s{dst+1}, s{plo+1}, 0")
        a.I(f"s_mov_b32 s{dst+2}, {nrec}\ns_mov_b32 s{dst+3}, 0x00020000")
    srd(SRD_X, 16, None, 1152)
    a.I(f"""
    s_mul_i32 s{S_T0}, s{S_KQ}, 1179648
    s_lshl_b32 s{S_T1}, s{S_G}, 9
    s_add_u32 s{S_T0}, s{S_T0}, s{S_T1}
    s_lshl_b32 s{S_T1}, s{S_CB}, 7
    s_add_u32 s{S_T0}, s{S_T0}, s{S_T1}
    s_sub_u32 s{S_T2}, 4718592, s{S_T0}
    """)
    srd(SRD_WQ, 22, S_T0, f"s{S_T2}")
    a.I(f"""
    s_lshl_b32 s{S_T0}, s{S_G}, 21
    s_lshl_b32 s{S_T1}, s{S_S}, 15
    s_add_u32 s{S_T0}, s{S_T0}, s{S_T1}
    s_add_u32 s{S_T0}, s{S_T0}, 1572864
    """)
    srd(SRD_K, 18, S_T0, 32768)
    srd(SRD_V, 20, S_T0, 32768)
    a.I(f"""
    s_cmp_lt_u32 s{S_G}, 8
    s_cselect_b32 s{S_TMPA}, s28, s30
    s_cselect_b32 s{S_TMPB}, s29, s31
    s_mul_i32 s{S_T0}, s{S_S}, 331776
    s_and_b32 s{S_T1}, s{S_G}, 7
    s_mul_i32 s{S_T1}, s{S_T1}, 1152
    s_add_u32 s{S_T0}, s{S_T0}, s{S_T1}
    """)
    srd(SRD_GU, S_TMPA, S_T0, 36 * 9216)
    a.I(f"s_mul_i32 s{S_T0}, s2, 18432")
    srd(SRD_WO, 24, S_T0, 18432)
    a.I(f"s_mul_i32 s{S_T0}, s2, 20736")
    srd(SRD_WD, 32, S_T0, 20736)
    srd(SRD_WS, 38, None, WS_BYTES)
    srd(SRD_OUT, 34, None, 1152)

def wave_reduce_to63(a, reg, op="v_add_f32"):
    for sh in (1, 2, 4, 8):
        a.I(f"{op} v{reg}, v{reg}, v{reg} row_shr:{sh}")
    a.I(f"{op} v{reg}, v{reg}, v{reg} row_bcast:15 row_mask:0xa")
    a.I(f"{op} v{reg}, v{reg}, v{reg} row_bcast:31 row_mask:0xc")

def row_allreduce(a, regs, op="v_add_f32"):
    for sh in (8, 4, 2, 1):
        for r in regs:
            a.I(f"{op} v{r}, v{r}, v{r} row_ror:{sh}")

def to_bf16_lo(a, dst, src):
    a.I(f"v_cvt_pk_bf16_f32 v{dst}, v{src}, 0")

def round_bf16(a, dst, src):
    a.I(f"v_cvt_pk_bf16_f32 v{dst}, v{src}, 0")
    a.I(f"v_lshlrev_b32 v{dst}, 16, v{dst}")

def masked(a, c, cond_lt, body, name="m"):
    lab = c.lab("skip_" + name)
    a.I(f"v_cmp_gt_u32 vcc, {cond_lt}, v0")
    a.I(f"s_and_saveexec_b64 s[{S_EX}:{S_EX+1}], vcc")
    a.I(f"s_cbranch_execz {lab}")
    body()
    a.L(lab)
    a.I(f"s_mov_b64 exec, -1")

def masked_range(a, c, lo, hi, tmp, body, name="mr"):
    lab = c.lab("skip_" + name)
    a.I(f"v_subrev_u32 v{tmp}, {lo}, v0")
    a.I(f"v_cmp_gt_u32 vcc, {hi-lo}, v{tmp}")
    a.I(f"s_and_saveexec_b64 s[{S_EX}:{S_EX+1}], vcc")
    a.I(f"s_cbranch_execz {lab}")
    body()
    a.L(lab)
    a.I(f"s_mov_b64 exec, -1")

def barrier(a):
    a.I("s_waitcnt lgkmcnt(0)")
    a.I("s_barrier")

def dot_slab(a, data, clo, chi, acc, first):
    for j in range(4):
        s2a = "0" if first else f"v{acc+2*j}"
        s2b = "0" if first else f"v{acc+2*j+1}"
        a.I(f"v_dot2_f32_bf16 v{acc+2*j}, v{data+j}, v{clo}, {s2a}")
        a.I(f"v_dot2_f32_bf16 v{acc+2*j+1}, v{data+j}, v{chi}, {s2b}")

def sum_chain(a, dst, regs):
    a.I(f"v_add_f32 v{dst}, v{regs[0]}, v{regs[1]}")
    for r in regs[2:]:
        a.I(f"v_add_f32 v{dst}, v{dst}, v{r}")

def store_granule(a, c, g4, voff, soff):
    a.I(f"v_mov_b32 v{g4+2}, s{S_TAG}")
    a.I(f"v_mov_b32 v{g4+3}, s{S_TAG+1}")
    a.I(f"buffer_store_dwordx4 {vr(g4,4)}, v{voff}, {sr(SRD_WS)}, {soff} offen{c.stmod}")

D_WQ, D_GU, D_K, D_V, D_WO, D_WD = 16, 24, 44, 60, 76, 84
BULK = " nt"

def issue_x(a):   a.I(f"v_lshlrev_b32 v5, 1, v0\nbuffer_load_ushort v15, v5, {sr(SRD_X)}, 0 offen")
def issue_wq(a):
    a.I(f"""
    v_lshrrev_b32 v5, 3, v0
    v_and_b32 v6, 7, v0
    v_lshlrev_b32 v5, 13, v5
    v_lshl_add_u32 v5, v6, 4, v5
    buffer_load_dwordx4 {vr(D_WQ,4)}, v5, {sr(SRD_WQ)}, 0 offen{BULK}
    buffer_load_dwordx4 {vr(D_WQ+4,4)}, v5, {sr(SRD_WQ)}, s{S_OFFQ2} offen{BULK}
    """)
def issue_gu(a):
    a.I(f"""
    v_mul_u32_u24 v5, 9216, v{V_RG}
    v_lshl_add_u32 v5, v{V_CH}, 4, v5
    buffer_load_dwordx4 {vr(D_GU,4)}, v5, {sr(SRD_GU)}, 0 offen{BULK}
    """)
    for i in range(1, 5):
        a.I(f"buffer_load_dwordx4 {vr(D_GU+4*i,4)}, v5, {sr(SRD_GU)}, s{S_OFF8+i} offen{BULK}")
def issue_kv(a, which):
    base, srd = (D_K, SRD_K) if which == "K" else (D_V, SRD_V)
    a.I(f"""
    v_lshrrev_b32 v5, 6, v0
    v_lshlrev_b32 v5, 12, v5
    v_lshl_add_u32 v5, v{V_LANE}, 4, v5
    """)
    for i in range(4):
        a.I(f"buffer_load_dwordx4 {vr(base+4*i,4)}, v5, {sr(srd)}, 0 offen" + (f" offset:{1024*i}" if i else "") + BULK)
def issue_wo(a):
    a.I(f"buffer_load_dwordx4 {vr(D_WO,4)}, v{V_T16}, {sr(SRD_WO)}, 0 offen{BULK}")
    a.I(f"buffer_load_dwordx4 {vr(D_WO+4,4)}, v{V_T16}, {sr(SRD_WO)}, s{S_OFFR} offen{BULK}")
def issue_wd(a):
    a.I(f"buffer_load_dwordx4 {vr(D_WD,4)}, v{V_T16}, {sr(SRD_WD)}, 0 offen{BULK}")
    a.I(f"buffer_load_dwordx4 {vr(D_WD+4,4)}, v{V_T16}, {sr(SRD_WD)}, s{S_OFFR} offen{BULK}")
    a.I(f"buffer_load_dwordx4 {vr(D_WD+8,4)}, v{V_T16}, {sr(SRD_WD)}, s{S_OFFR+1} offen{BULK}")

def ln_stage(a, c, wait_x):
    XF, A_, B_, Z = 96, 97, 98, 99
    R0 = 100
    MEAN, VAR, D_ = 112, 113, 114
    a.C("layernorm")
    a.I(wait_x)
    a.I(f"""
    v_lshlrev_b32 v{XF}, 16, v15
    v_mov_b32 v{Z}, 0
    v_mov_b32 v{A_}, v{XF}
    """)
    def wg_sum(red, dst):
        wave_reduce_to63(a, A_)
        a.I(f"""
        v_readlane_b32 s{S_T0}, v{A_}, 63
        s_lshl_b32 s{S_T1}, s{S_WAVE}, 2
        v_mov_b32 v{B_}, s{S_T0}
        v_mov_b32 v{A_}, s{S_T1}
        ds_write_b32 v{A_}, v{B_} offset:{red}
        """)
        barrier(a)
        a.I(f"""
        ds_read_b128 {vr(R0,4)}, v{Z} offset:{red}
        ds_read_b128 {vr(R0+4,4)}, v{Z} offset:{red+16}
        ds_read_b32 v{R0+8}, v{Z} offset:{red+32}
        s_waitcnt lgkmcnt(0)
        """)
        sum_chain(a, dst, list(range(R0, R0 + 9)))
        a.I(f"v_mul_f32 v{dst}, {f32bits(1.0/576.0):#x}, v{dst}")
    a.I(f"""
    v_lshlrev_b32 v{B_}, 2, v{V_LANE}
    ds_write_b32 v{B_}, v{Z} offset:{XNBUF + 576*4}
    """)
    wg_sum(LN_RED1, MEAN)
    a.I(f"""
    v_sub_f32 v{D_}, v{XF}, v{MEAN}
    v_mul_f32 v{A_}, v{D_}, v{D_}
    """)
    wg_sum(LN_RED2, VAR)
    MB, T1, DEN, XC, RC, Q0, E_ = 100, 101, 102, 103, 104, 105, 106
    round_bf16(a, MB, MEAN)
    round_bf16(a, T1, VAR)
    a.I(f"v_add_f32 v{T1}, {f32bits(1e-5):#x}, v{T1}")
    round_bf16(a, T1, T1)
    a.I(f"v_sqrt_f32 v{DEN}, v{T1}")
    round_bf16(a, DEN, DEN)
    a.I(f"v_sub_f32 v{XC}, v{XF}, v{MB}")
    round_bf16(a, XC, XC)
    a.I(f"""
    v_rcp_f32 v{RC}, v{DEN}
    v_mul_f32 v{Q0}, v{XC}, v{RC}
    v_fma_f32 v{E_}, -v{Q0}, v{DEN}, v{XC}
    v_fma_f32 v{Q0}, v{E_}, v{RC}, v{Q0}
    """)
    to_bf16_lo(a, Q0, Q0)
    a.I(f"""
    v_lshlrev_b32 v{E_}, 2, v0
    ds_write_b32 v{E_}, v{Q0} offset:{XNBUF}
    """)
    barrier(a)

def reduce8_inwave(a, acc):
    for k in range(4): a.I(f"v_permlane32_swap_b32 v{acc+2*k}, v{acc+2*k+1}")
    for k in range(4): a.I(f"v_add_f32 v{acc+2*k}, v{acc+2*k}, v{acc+2*k+1}")
    for m in range(2): a.I(f"v_permlane16_swap_b32 v{acc+4*m}, v{acc+4*m+2}")
    for m in range(2): a.I(f"v_add_f32 v{acc+4*m}, v{acc+4*m}, v{acc+4*m+2}")
    for m in range(2): a.I(f"v_add_f32 v{acc+4*m}, v{acc+4*m}, v{acc+4*m} row_ror:8")

def phaseA_q(a, c, waits):
    CL0, CL1, CH0, CH1, AD = 96, 97, 98, 99, 100
    ACC = 104
    a.C("q slab")
    a.I(f"""
    v_lshrrev_b32 v{AD}, 3, v0
    v_lshlrev_b32 v{AD}, 2, v{AD}
    s_mul_i32 s{S_T0}, s{S_KQ}, 576
    v_add_u32 v{AD}, s{S_T0}, v{AD}
    ds_read_b32 v{CL0}, v{AD} offset:{XNBUF}
    ds_read_b32 v{CL1}, v{AD} offset:{XNBUF+288}
    s_waitcnt lgkmcnt(0)
    v_lshlrev_b32 v{CH0}, 16, v{CL0}
    v_lshlrev_b32 v{CH1}, 16, v{CL1}
    """)
    a.I(waits[0]); dot_slab(a, D_WQ, CL0, CH0, ACC, True)
    a.I(waits[1]); dot_slab(a, D_WQ + 4, CL1, CH1, ACC, False)
    reduce8_inwave(a, ACC)
    a.I(f"""
    v_lshrrev_b32 v{CL0}, 4, v{V_LANE}
    v_and_b32 v{CL1}, 1, v{CL0}
    v_lshlrev_b32 v{CL1}, 3, v{CL1}
    v_lshrrev_b32 v{CL0}, 1, v{CL0}
    v_lshl_add_u32 v{CL1}, v{CL0}, 2, v{CL1}
    v_and_b32 v{CL0}, 7, v{V_LANE}
    v_lshl_add_u32 v{CL1}, v{CL0}, 5, v{CL1}
    s_lshl_b32 s{S_T0}, s{S_WAVE}, 8
    v_add_u32 v{CL1}, s{S_T0}, v{CL1}
    ds_write_b32 v{CL1}, v{ACC} offset:{QPART}
    ds_write_b32 v{CL1}, v{ACC+4} offset:{QPART+16}
    """)

def phaseA_gu(a, c, waits):
    CL, CH, AD = 96, 101, 106
    ACC = 112
    a.C("gate/up slab")
    a.I(f"""
    s_mul_i32 s{S_T0}, s{S_S}, 144
    v_lshlrev_b32 v{AD}, 2, v{V_RG}
    v_add_u32 v{AD}, s{S_T0}, v{AD}
    """)
    for i in range(5): a.I(f"ds_read_b32 v{CL+i}, v{AD} offset:{XNBUF+32*i}")
    a.I("s_waitcnt lgkmcnt(0)")
    for i in range(5): a.I(f"v_lshlrev_b32 v{CH+i}, 16, v{CL+i}")
    for i in range(5):
        a.I(waits[i]); dot_slab(a, D_GU + 4 * i, CL + i, CH + i, ACC, i == 0)
    a.I(f"""
    v_mul_u32_u24 v{AD}, 2304, v{V_RG}
    v_lshl_add_u32 v{AD}, v{V_CH}, 5, v{AD}
    ds_write_b128 v{AD}, {vr(ACC,4)} offset:{GUPART}
    ds_write_b128 v{AD}, {vr(ACC+4,4)} offset:{GUPART+16}
    """)

def phaseA_publish_q(a, c):
    G = 96; R = 100
    def body():
        a.I(f"v_lshlrev_b32 v5, 3, v0")
        for wv in range(9):
            a.I(f"ds_read_b64 {vr(R+2*wv,2)}, v5 offset:{QPART+256*wv}")
        a.I("s_waitcnt lgkmcnt(0)")
        sum_chain(a, G, [R + 2 * wv for wv in range(9)])
        sum_chain(a, G + 1, [R + 2 * wv + 1 for wv in range(9)])
        a.I(f"s_lshl_b32 s{S_T0}, s2, 9")
        if R1: a.I(f"s_add_u32 s{S_T0}, s{S_T0}, {R1}")
        store_granule(a, c, G, V_T16, f"s{S_T0}")
    masked(a, c, 32, body, "pubq")

def phaseA_publish_gu(a, c):
    G = 96; R = 100; TP = 6
    def body():
        a.I(f"v_lshlrev_b32 v5, 3, v{TP}")
        for rg in range(8):
            a.I(f"ds_read_b64 {vr(R+2*rg,2)}, v5 offset:{GUPART+2304*rg}")
        a.I("s_waitcnt lgkmcnt(0)")
        sum_chain(a, G, [R + 2 * rg for rg in range(8)])
        sum_chain(a, G + 1, [R + 2 * rg + 1 for rg in range(8)])
        a.I(f"s_mul_i32 s{S_T0}, s2, 4608\ns_add_u32 s{S_T0}, s{S_T0}, {R2}")
        a.I(f"v_lshlrev_b32 v5, 4, v{TP}")
        store_granule(a, c, G, 5, f"s{S_T0}")
    masked_range(a, c, 64, 352, TP, body, "pubgu")

def phaseB_gather_q(a, c):
    G = 96
    def body():
        a.I(f"""
        v_lshrrev_b32 v5, 5, v0
        v_lshlrev_b32 v5, 11, v5
        v_and_b32 v6, 31, v0
        v_lshl_add_u32 v5, v6, 4, v5
        s_lshl_b32 s{S_T0}, s{S_G}, 13
        """)
        if R1: a.I(f"s_add_u32 s{S_T0}, s{S_T0}, {R1}")
        for k in range(4):
            a.I(f"buffer_load_dwordx4 {vr(G+4*k,4)}, v5, {sr(SRD_WS)}, s{S_T0} offen" + (f" offset:{512*k}" if k else "") + c.ldmod)
        a.I("s_waitcnt vmcnt(0)")
        sum_chain(a, G, [G, G + 4, G + 8, G + 12])
        sum_chain(a, G + 1, [G + 1, G + 5, G + 9, G + 13])
        a.I(f"""
        v_cvt_pk_bf16_f32 v{G}, v{G}, v{G+1}
        v_lshlrev_b32 v5, 2, v0
        ds_write_b32 v5, v{G} offset:{QBUF}
        """)
    masked(a, c, 128, body, "gq")

def reduce16_inwave(a, acc):
    for k in range(8): a.I(f"v_permlane32_swap_b32 v{acc+2*k}, v{acc+2*k+1}")
    for k in range(8): a.I(f"v_add_f32 v{acc+2*k}, v{acc+2*k}, v{acc+2*k+1}")
    for m in range(4): a.I(f"v_permlane16_swap_b32 v{acc+4*m}, v{acc+4*m+2}")
    for m in range(4): a.I(f"v_add_f32 v{acc+4*m}, v{acc+4*m}, v{acc+4*m+2}")

def phaseB_attn(a, c, waitK, waitV):
    lab = c.lab("skip_attn")
    Q0, Q1 = 96, 100
    SC = 104
    P_LO, P_HI = 112, 120
    ACC = 128
    MX0, MX1, CC, MC0, MC1, L0, L1, T = 144, 145, 146, 147, 148, 149, 150, 151
    ST4 = 152
    a.C("attention: scores / softmax / PV for 16 keys per wave")
    a.I(f"s_cmp_ge_u32 s{S_WAVE}, 8\ns_cbranch_scc1 {lab}")
    a.I(f"""
    v_and_b32 v5, 15, v{V_LANE}
    v_lshlrev_b32 v5, 4, v5
    ds_read_b128 {vr(Q0,4)}, v5 offset:{QBUF}
    ds_read_b128 {vr(Q1,4)}, v5 offset:{QBUF+256}
    v_mov_b32 v{CC}, s{S_C}
    s_waitcnt lgkmcnt(0)
    """)
    a.I(waitK)
    for i in range(4):
        for h, q in ((0, Q0), (1, Q1)):
            for j in range(4):
                s2 = "0" if j == 0 else f"v{SC+h*4+i}"
                a.I(f"v_dot2_f32_bf16 v{SC+h*4+i}, v{D_K+4*i+j}, v{q+j}, {s2}")
    row_allreduce(a, [SC + k for k in range(8)])
    for h, mx, sm, mc in ((0, MX0, S_M0, MC0), (1, MX1, S_M1, MC1)):
        a.I(f"v_max3_f32 v{mx}, v{SC+4*h}, v{SC+4*h+1}, v{SC+4*h+2}")
        a.I(f"v_max_f32 v{mx}, v{mx}, v{SC+4*h+3}")
    for mx in (MX0, MX1): a.I(f"v_max_f32 v{mx}, v{mx}, v{mx} row_bcast:15 row_mask:0xa")
    for mx in (MX0, MX1): a.I(f"v_max_f32 v{mx}, v{mx}, v{mx} row_bcast:31 row_mask:0xc")
    a.I(f"v_readlane_b32 s{S_M0}, v{MX0}, 63\nv_readlane_b32 s{S_M1}, v{MX1}, 63")
    a.I(f"v_mul_f32 v{MC0}, s{S_M0}, v{CC}\nv_mul_f32 v{MC1}, s{S_M1}, v{CC}")
    for h, mc in ((0, MC0), (1, MC1)):
        for i in range(4):
            a.I(f"v_fma_f32 v{SC+4*h+i}, v{SC+4*h+i}, v{CC}, -v{mc}")
    for k in range(8): a.I(f"v_exp_f32 v{SC+k}, v{SC+k}")
    for k in range(8):
        a.I(f"v_cvt_pk_bf16_f32 v{P_LO+k}, v{SC+k}, 0")
        a.I(f"v_cvt_pk_bf16_f32 v{P_HI+k}, 0, v{SC+k}")
    for h, l in ((0, L0), (1, L1)):
        sum_chain(a, l, [SC + 4 * h + i for i in range(4)])
    for l in (L0, L1): a.I(f"v_add_f32 v{l}, v{l}, v{l} row_bcast:15 row_mask:0xa")
    for l in (L0, L1): a.I(f"v_add_f32 v{l}, v{l}, v{l} row_bcast:31 row_mask:0xc")
    a.I(waitV)
    for i in range(4):
        for h in range(2):
            for j in range(4):
                A0 = ACC + 8 * h + 2 * j
                a.I(f"v_dot2_f32_bf16 v{A0}, v{D_V+4*i+j}, v{P_LO+4*h+i}, " + ("0" if i == 0 else f"v{A0}"))
                a.I(f"v_dot2_f32_bf16 v{A0+1}, v{D_V+4*i+j}, v{P_HI+4*h+i}, " + ("0" if i == 0 else f"v{A0+1}"))
    reduce16_inwave(a, ACC)
    a.I(f"""
    s_lshl_b32 s{S_T0}, s{S_WAVE}, 10
    v_lshlrev_b32 v5, 2, v{V_LANE}
    v_add_u32 v5, s{S_T0}, v5
    """)
    for m in range(4): a.I(f"ds_write_b32 v5, v{ACC+4*m} offset:{OBUF+256*m}")
    a.I(f"""
    v_mov_b32 v{ST4}, v{MC0}
    v_mov_b32 v{ST4+1}, v{L0}
    v_mov_b32 v{ST4+2}, v{MC1}
    v_mov_b32 v{ST4+3}, v{L1}
    s_lshl_b32 s{S_T0}, s{S_WAVE}, 4
    v_mov_b32 v5, s{S_T0}
    s_mov_b32 exec_lo, 0
    s_mov_b32 exec_hi, 0x80000000
    ds_write_b128 v5, {vr(ST4,4)} offset:{STATS}
    s_mov_b64 exec, -1
    """)
    a.L(lab)

def phaseB_merge_publish(a, c):
    SM = 96
    F = 112
    OA, OB = 120, 128
    G = 136
    MC, LL, T = 140, 141, 142
    GS = 144
    def body():
        a.I(f"""
        v_lshrrev_b32 v5, 6, v0
        v_lshlrev_b32 v5, 3, v5
        """)
        for wv in range(8): a.I(f"ds_read_b64 {vr(SM+2*wv,2)}, v5 offset:{STATS+16*wv}")
        a.I(f"""
        v_lshrrev_b32 v6, 5, v0
        v_lshlrev_b32 v6, 8, v6
        v_bfe_u32 v7, v0, 4, 1
        v_lshl_add_u32 v6, v7, 6, v6
        v_and_b32 v7, 15, v0
        v_lshl_add_u32 v6, v7, 2, v6
        """)
        for wv in range(8):
            a.I(f"ds_read_b32 v{OA+wv}, v6 offset:{OBUF+1024*wv}")
            a.I(f"ds_read_b32 v{OB+wv}, v6 offset:{OBUF+1024*wv+128}")
        a.I("s_waitcnt lgkmcnt(0)")
        mcs = [SM + 2 * wv for wv in range(8)]; ls = [SM + 2 * wv + 1 for wv in range(8)]
        a.I(f"v_max3_f32 v{MC}, v{mcs[0]}, v{mcs[1]}, v{mcs[2]}")
        a.I(f"v_max3_f32 v{MC}, v{MC}, v{mcs[3]}, v{mcs[4]}")
        a.I(f"v_max3_f32 v{MC}, v{MC}, v{mcs[5]}, v{mcs[6]}")
        a.I(f"v_max_f32 v{MC}, v{MC}, v{mcs[7]}")
        for wv in range(8): a.I(f"v_sub_f32 v{F+wv}, v{mcs[wv]}, v{MC}")
        for wv in range(8): a.I(f"v_exp_f32 v{F+wv}, v{F+wv}")
        a.I(f"v_mul_f32 v{LL}, v{F}, v{ls[0]}")
        a.I(f"v_mul_f32 v{G}, v{F}, v{OA}")
        a.I(f"v_mul_f32 v{G+1}, v{F}, v{OB}")
        for wv in range(1, 8):
            a.I(f"v_fmac_f32 v{LL}, v{F+wv}, v{ls[wv]}")
            a.I(f"v_fmac_f32 v{G}, v{F+wv}, v{OA+wv}")
            a.I(f"v_fmac_f32 v{G+1}, v{F+wv}, v{OB+wv}")
        a.I(f"""
        v_lshrrev_b32 v5, 6, v0
        v_lshlrev_b32 v5, 3, v5
        v_bfe_u32 v6, v0, 1, 3
        v_add_u32 v5, v5, v6
        v_lshlrev_b32 v5, 11, v5
        v_and_b32 v6, 1, v0
        v_lshl_add_u32 v5, v6, 6, v5
        v_bfe_u32 v6, v0, 5, 1
        v_lshl_add_u32 v5, v6, 5, v5
        v_bfe_u32 v6, v0, 4, 1
        v_lshl_add_u32 v5, v6, 4, v5
        s_lshl_b32 s{S_T0}, s{S_G}, 15
        s_lshl_b32 s{S_T1}, s{S_S}, 7
        s_add_u32 s{S_T0}, s{S_T0}, s{S_T1}
        s_add_u32 s{S_T0}, s{S_T0}, {R3}
        """)
        store_granule(a, c, G, 5, f"s{S_T0}")
        lab = c.lab("skip_pst")
        a.I(f"""
        v_and_b32 v6, 63, v0
        v_cmp_eq_u32 vcc, 0, v6
        s_and_saveexec_b64 s[14:15], vcc
        s_cbranch_execz {lab}
        v_mov_b32 v{GS}, v{MC}
        v_mov_b32 v{GS+1}, v{LL}
        v_lshrrev_b32 v5, 6, v0
        v_lshlrev_b32 v5, 4, v5
        s_lshl_b32 s{S_T0}, s2, 5
        s_add_u32 s{S_T0}, s{S_T0}, {R3S}
        """)
        store_granule(a, c, GS, 5, f"s{S_T0}")
        a.L(lab)
    masked(a, c, 128, body, "mrg")

def phaseC_gather(a, c):
    G = 96
    def body_o():
        a.I(f"""
        s_lshl_b32 s{S_T0}, s{S_G}, 15
        s_lshl_b32 s{S_T1}, s{S_S}, 11
        s_add_u32 s{S_T0}, s{S_T0}, s{S_T1}
        s_add_u32 s{S_T0}, s{S_T0}, {R3}
        buffer_load_dwordx4 {vr(G,4)}, v{V_T16}, {sr(SRD_WS)}, s{S_T0} offen{c.ldmod}
        v_lshlrev_b32 v5, 3, v0
        s_waitcnt vmcnt(0)
        ds_write_b64 v5, {vr(G,2)} offset:{OG}
        """)
    masked(a, c, 128, body_o, "go")
    def body_s():
        a.I(f"""
        s_lshl_b32 s{S_T0}, s{S_G}, 9
        s_lshr_b32 s{S_T1}, s{S_S}, 3
        s_lshl_b32 s{S_T1}, s{S_T1}, 4
        s_add_u32 s{S_T0}, s{S_T0}, s{S_T1}
        s_add_u32 s{S_T0}, s{S_T0}, {R3S}
        v_lshlrev_b32 v5, 5, v6
        buffer_load_dwordx4 {vr(G,4)}, v5, {sr(SRD_WS)}, s{S_T0} offen{c.ldmod}
        v_lshlrev_b32 v5, 3, v6
        s_waitcnt vmcnt(0)
        ds_write_b64 v5, {vr(G,2)} offset:{ST}
        """)
    masked_range(a, c, 128, 144, 6, body_s, "gs")
    def body_g():
        a.I(f"""
        v_mul_u32_u24 v7, 7282, v6
        v_lshrrev_b32 v7, 16, v7
        v_mul_u32_u24 v8, 9, v7
        v_sub_u32 v8, v6, v8
        v_lshrrev_b32 v9, 4, v7
        v_and_b32 v10, 15, v7
        v_lshlrev_b32 v9, 7, v9
        v_add_u32 v9, v9, v10
        v_mul_u32_u24 v9, 288, v9
        v_add_u32 v9, v9, v8
        v_lshlrev_b32 v9, 4, v9
        s_lshr_b32 s{S_T0}, s2, 5
        s_mul_i32 s{S_T0}, s{S_T0}, {16*288*16}
        s_and_b32 s{S_T1}, s2, 31
        s_mul_i32 s{S_T1}, s{S_T1}, 144
        s_add_u32 s{S_T0}, s{S_T0}, s{S_T1}
        s_add_u32 s{S_T0}, s{S_T0}, {R2}
        buffer_load_dwordx4 {vr(G,4)}, v9, {sr(SRD_WS)}, s{S_T0} offen{c.ldmod}
        v_lshlrev_b32 v5, 3, v6
        s_waitcnt vmcnt(0)
        ds_write_b64 v5, {vr(G,2)} offset:{GG}
        """)
    masked_range(a, c, 192, 480, 6, body_g, "gg")

def phaseC_combine(a, c):
    lab0 = c.lab("skip_oc")
    S2, F, LS, O4, M, T = 96, 98, 99, 100, 104, 105
    a.I(f"s_cmp_lg_u32 s{S_WAVE}, 0\ns_cbranch_scc1 {lab0}")
    a.I(f"""
    v_and_b32 v5, 15, v{V_LANE}
    v_lshlrev_b32 v6, 3, v5
    ds_read_b64 {vr(S2,2)}, v6 offset:{ST}
    v_lshlrev_b32 v6, 6, v5
    v_lshrrev_b32 v7, 4, v{V_LANE}
    v_lshl_add_u32 v6, v7, 4, v6
    ds_read_b128 {vr(O4,4)}, v6 offset:{OG}
    s_waitcnt lgkmcnt(0)
    v_mov_b32 v{M}, v{S2}
    """)
    row_allreduce(a, [M], "v_max_f32")
    a.I(f"""
    v_sub_f32 v{F}, v{S2}, v{M}
    v_exp_f32 v{F}, v{F}
    v_mul_f32 v{LS}, v{F}, v{S2+1}
    """)
    for k in range(4): a.I(f"v_mul_f32 v{O4+k}, v{O4+k}, v{F}")
    row_allreduce(a, [LS, O4, O4 + 1, O4 + 2, O4 + 3])
    a.I(f"v_rcp_f32 v{T}, v{LS}")
    for k in range(4): a.I(f"v_mul_f32 v{O4+k}, v{O4+k}, v{T}")
    for k in range(4): to_bf16_lo(a, O4 + k, O4 + k)
    a.I(f"""
    v_lshlrev_b32 v6, 4, v7
    ds_write_b128 v6, {vr(O4,4)} offset:{COEFO}
    v_mov_b32 v{T}, 0
    v_and_b32 v6, 7, v5
    v_lshlrev_b32 v6, 2, v6
    ds_write_b32 v6, v{T} offset:{COEFH+72}
    """)
    a.L(lab0)

def phaseC_hcombine(a, c):
    Gv, Uv, T, E = 96, 97, 98, 99
    def body():
        a.I(f"""
        v_lshrrev_b32 v7, 4, v6
        v_and_b32 v8, 15, v6
        v_mul_u32_u24 v8, 72, v8
        v_lshl_add_u32 v8, v7, 2, v8
        ds_read_b32 v{Gv}, v8 offset:{GG}
        ds_read_b32 v{Uv}, v8 offset:{GG+1152}
        s_waitcnt lgkmcnt(0)
        """)
        row_allreduce(a, [Gv, Uv])
        round_bf16(a, Gv, Gv)
        round_bf16(a, Uv, Uv)
        a.I(f"""
        v_mul_f32 v{E}, {f32bits(-LOG2E):#x}, v{Gv}
        v_exp_f32 v{E}, v{E}
        v_add_f32 v{E}, 1.0, v{E}
        v_rcp_f32 v{E}, v{E}
        v_mul_f32 v{T}, v{Gv}, v{E}
        """)
        round_bf16(a, T, T)
        a.I(f"v_mul_f32 v{T}, v{T}, v{Uv}")
        to_bf16_lo(a, T, T)
        a.I(f"""
        v_lshlrev_b32 v8, 2, v7
        ds_write_b32 v8, v{T} offset:{COEFH}
        """)
    masked_range(a, c, 64, 352, 6, body, "hc")

def phaseC_slabs(a, c, waitsO, waitsD):
    CO, CD, HO, HD, AD = 96, 98, 101, 103, 106
    AS, AY = 112, 120
    a.I(f"v_lshlrev_b32 v{AD}, 2, v{V_RG}")
    for i in range(2): a.I(f"ds_read_b32 v{CO+i}, v{AD} offset:{COEFO+32*i}")
    for i in range(3): a.I(f"ds_read_b32 v{CD+i}, v{AD} offset:{COEFH+32*i}")
    a.I("s_waitcnt lgkmcnt(0)")
    for i in range(2): a.I(f"v_lshlrev_b32 v{HO+i}, 16, v{CO+i}")
    for i in range(3): a.I(f"v_lshlrev_b32 v{HD+i}, 16, v{CD+i}")
    for i in range(2):
        a.I(waitsO[i]); dot_slab(a, D_WO + 4 * i, CO + i, HO + i, AS, i == 0)
    for i in range(3):
        a.I(waitsD[i]); dot_slab(a, D_WD + 4 * i, CD + i, HD + i, AY, i == 0)
    a.I(f"""
    v_mul_u32_u24 v{AD}, 2304, v{V_RG}
    v_lshl_add_u32 v{AD}, v{V_CH}, 5, v{AD}
    ds_write_b128 v{AD}, {vr(AS,4)} offset:{PS}
    ds_write_b128 v{AD}, {vr(AS+4,4)} offset:{PS+16}
    ds_write_b128 v{AD}, {vr(AY,4)} offset:{PY}
    ds_write_b128 v{AD}, {vr(AY+4,4)} offset:{PY+16}
    """)

def phaseC_publish(a, c):
    G = 96; R = 100
    a.I(f"v_lshlrev_b32 v5, 2, v0")
    a.I(f"v_add_u32 v6, {PY}, v5")
    for rg in range(8): a.I(f"ds_read_b32 v{R+rg}, v5 offset:{PS+2304*rg}")
    for rg in range(8): a.I(f"ds_read_b32 v{R+8+rg}, v6 offset:{2304*rg}")
    a.I("s_waitcnt lgkmcnt(0)")
    sum_chain(a, G, [R + rg for rg in range(8)])
    sum_chain(a, G + 1, [R + 8 + rg for rg in range(8)])
    a.I(f"""
    v_mul_u32_u24 v5, 7282, v0
    v_lshrrev_b32 v5, 16, v5
    v_mul_u32_u24 v6, 9, v5
    v_sub_u32 v6, v0, v6
    v_mul_u32_u24 v5, 36864, v5
    v_lshl_add_u32 v5, v6, 4, v5
    s_mul_i32 s{S_T0}, s2, 144
    s_add_u32 s{S_T0}, s{S_T0}, {R4}
    """)
    store_granule(a, c, G, 5, f"s{S_T0}")

def phaseD(a, c):
    lab = c.lab("skip_final")
    G = 96
    a.I(f"s_cmp_ge_u32 s2, 64\ns_cbranch_scc1 {lab}")
    a.I(f"s_mul_i32 s{S_T0}, s2, 36864\ns_add_u32 s{S_T0}, s{S_T0}, {R4}")
    for k in range(4):
        a.I(f"s_add_u32 s{S_T1}, s{S_T0}, {9216*k}")
        a.I(f"buffer_load_dwordx4 {vr(G+4*k,4)}, v{V_T16}, {sr(SRD_WS)}, s{S_T1} offen{c.ldmod}")
    a.I(f"""
    s_mul_i32 s{S_T1}, s2, 9
    s_add_u32 s{S_T1}, s{S_T1}, s{S_WAVE}
    s_lshl_b32 s{S_T1}, s{S_T1}, 1
    v_mov_b32 v7, s{S_T1}
    buffer_load_ushort v15, v7, {sr(SRD_X)}, 0 offen
    v_lshlrev_b32 v5, 3, v0
    v_add_u32 v5, {FB}, v5
    s_waitcnt vmcnt(1)
    """)
    for k in range(4): a.I(f"ds_write_b64 v5, {vr(G+4*k,2)} offset:{4608*k}")
    barrier(a)
    a.I(f"""
    v_mul_u32_u24 v5, 72, v{V_LANE}
    s_lshl_b32 s{S_T1}, s{S_WAVE}, 3
    s_add_u32 s{S_T1}, s{S_T1}, {FB}
    v_add_u32 v5, s{S_T1}, v5
    """)
    for k in range(4): a.I(f"ds_read_b64 {vr(G+2*k,2)}, v5 offset:{4608*k}")
    a.I("s_waitcnt lgkmcnt(0)")
    SS, YY, T, E = 112, 113, 114, 115
    sum_chain(a, SS, [G, G + 2, G + 4, G + 6])
    sum_chain(a, YY, [G + 1, G + 3, G + 5, G + 7])
    for sh in (1, 2, 4, 8):
        a.I(f"v_add_f32 v{SS}, v{SS}, v{SS} row_shr:{sh}")
        a.I(f"v_add_f32 v{YY}, v{YY}, v{YY} row_shr:{sh}")
    for r in (SS, YY): a.I(f"v_add_f32 v{r}, v{r}, v{r} row_bcast:15 row_mask:0xa")
    for r in (SS, YY): a.I(f"v_add_f32 v{r}, v{r}, v{r} row_bcast:31 row_mask:0xc")
    round_bf16(a, SS, SS)
    round_bf16(a, YY, YY)
    a.I(f"""
    v_mul_f32 v{E}, {f32bits(-LOG2E):#x}, v{YY}
    v_exp_f32 v{E}, v{E}
    v_add_f32 v{E}, 1.0, v{E}
    v_rcp_f32 v{E}, v{E}
    v_mul_f32 v{T}, v{YY}, v{E}
    """)
    round_bf16(a, T, T)
    a.I(f"v_mul_f32 v{T}, v{SS}, v{T}")
    round_bf16(a, T, T)
    a.I(f"""
    s_waitcnt vmcnt(0)
    v_lshlrev_b32 v{E}, 16, v15
    v_add_f32 v{T}, v{E}, v{T}
    """)
    to_bf16_lo(a, T, T)
    a.I(f"""
    s_mov_b32 exec_lo, 0
    s_mov_b32 exec_hi, 0x80000000
    buffer_store_short v{T}, v7, {sr(SRD_OUT)}, 0 offen
    s_mov_b64 exec, -1
    """)
    a.L(lab)
```

```python
import sys
sys.path.insert(0, "gen")
from asmlib import Asm
import phases
from phases import *

REF = open("recurrent_scan__sliding_block_cached__swiglu_ffn__decode.s.ref").read()
HEADER = "\n".join(l for l in REF.split(".amdgcn_target")[0].splitlines() if l.startswith(";") and "@launch" not in l and "Override" not in l and "grid=ceil" not in l)
KN = "recurrent_scan__sliding_block_cached__swiglu_ffn__decode_kernel"
EPOCH = 0x480000
STAMPS = 128 << 20
MAXPOLL = 4096

class Vm:
    def __init__(self): self.ops = []
    def issue(self, *names): self.ops += list(names)
    def wait(self, name):
        i = max(k for k, n in enumerate(self.ops) if n == name)
        return f"s_waitcnt vmcnt({len(self.ops) - 1 - i})"

class Stamper:
    def __init__(self, on): self.on = on; self.n = 0
    def stamp(self, a):
        if not self.on: return
        lab = f"L_stamp_{self.n}"
        a.I(f"""
        s_cmp_lg_u32 s{S_WAVE}, 0
        s_cbranch_scc1 {lab}
        s_memrealtime s[94:95]
        s_waitcnt lgkmcnt(0)
        v_mov_b32 v14, s94
        s_lshl_b32 s93, s2, 6
        s_add_u32 s93, s93, {STAMPS + 4 * self.n}
        v_mov_b32 v13, s93
        s_mov_b64 exec, 1
        buffer_store_dword v14, v13, {sr(SRD_WS)}, 0 offen
        s_mov_b64 exec, -1
        """)
        a.L(lab)
        self.n += 1

def tagcheck(a, acc, gbases):
    first = True
    for g in gbases:
        for k, st in ((2, S_TAG), (3, S_TAG + 1)):
            if first:
                a.I(f"v_xor_b32 v{acc}, s{st}, v{g+k}"); first = False
            else:
                a.I(f"v_xor_b32 v5, s{st}, v{g+k}")
                a.I(f"v_or_b32 v{acc}, v{acc}, v5")

def poll(a, c, issue_loads, gbases, acc, name):
    top = c.lab("poll_" + name); done = c.lab("poll_done_" + name)
    a.I(f"s_mov_b32 s{S_T3}, 0")
    a.L(top)
    issue_loads()
    a.I(f"s_add_u32 s{S_T3}, s{S_T3}, 1")
    a.I("s_waitcnt vmcnt(0)")
    tagcheck(a, acc, gbases)
    a.I(f"""
    v_cmp_ne_u32 vcc, 0, v{acc}
    s_cbranch_vccz {done}
    s_cmp_lt_u32 s{S_T3}, {MAXPOLL}
    s_cbranch_scc1 {top}
    """)
    a.L(done)

def gather_q_poll(a, c):
    G = 96
    def body():
        a.I(f"""
        v_lshrrev_b32 v6, 5, v0
        v_lshlrev_b32 v6, 11, v6
        v_and_b32 v7, 31, v0
        v_lshl_add_u32 v6, v7, 4, v6
        s_lshl_b32 s{S_T0}, s{S_G}, 13
        """)
        if R1: a.I(f"s_add_u32 s{S_T0}, s{S_T0}, {R1}")
        def loads():
            for k in range(4):
                a.I(f"buffer_load_dwordx4 {vr(G+4*k,4)}, v6, {sr(SRD_WS)}, s{S_T0} offen" + (f" offset:{512*k}" if k else "") + c.ldmod)
        poll(a, c, loads, [G, G + 4, G + 8, G + 12], 112, "q")
        sum_chain(a, G, [G, G + 4, G + 8, G + 12])
        sum_chain(a, G + 1, [G + 1, G + 5, G + 9, G + 13])
        a.I(f"""
        v_cvt_pk_bf16_f32 v{G}, v{G}, v{G+1}
        v_lshlrev_b32 v5, 2, v0
        ds_write_b32 v5, v{G} offset:{QBUF}
        """)
    masked(a, c, 128, body, "gq")

def gather_c_poll(a, c):
    G = 96
    def body_o():
        a.I(f"""
        s_lshl_b32 s{S_T0}, s{S_G}, 15
        s_lshl_b32 s{S_T1}, s{S_S}, 11
        s_add_u32 s{S_T0}, s{S_T0}, s{S_T1}
        s_add_u32 s{S_T0}, s{S_T0}, {R3}
        """)
        poll(a, c, lambda: a.I(f"buffer_load_dwordx4 {vr(G,4)}, v{V_T16}, {sr(SRD_WS)}, s{S_T0} offen{c.ldmod}"), [G], 100, "o")
        a.I(f"""
        v_lshlrev_b32 v5, 3, v0
        ds_write_b64 v5, {vr(G,2)} offset:{OG}
        """)
    masked(a, c, 128, body_o, "go")
    def body_s():
        a.I(f"""
        s_lshl_b32 s{S_T0}, s{S_G}, 9
        s_lshr_b32 s{S_T1}, s{S_S}, 3
        s_lshl_b32 s{S_T1}, s{S_T1}, 4
        s_add_u32 s{S_T0}, s{S_T0}, s{S_T1}
        s_add_u32 s{S_T0}, s{S_T0}, {R3S}
        v_lshlrev_b32 v7, 5, v6
        """)
        poll(a, c, lambda: a.I(f"buffer_load_dwordx4 {vr(G,4)}, v7, {sr(SRD_WS)}, s{S_T0} offen{c.ldmod}"), [G], 100, "s")
        a.I(f"""
        v_lshlrev_b32 v5, 3, v6
        ds_write_b64 v5, {vr(G,2)} offset:{ST}
        """)
    masked_range(a, c, 128, 144, 6, body_s, "gs")
    def body_g():
        a.I(f"""
        v_mul_u32_u24 v7, 7282, v6
        v_lshrrev_b32 v7, 16, v7
        v_mul_u32_u24 v8, 9, v7
        v_sub_u32 v8, v6, v8
        v_lshrrev_b32 v9, 4, v7
        v_and_b32 v10, 15, v7
        v_lshlrev_b32 v9, 7, v9
        v_add_u32 v9, v9, v10
        v_mul_u32_u24 v9, 288, v9
        v_add_u32 v9, v9, v8
        v_lshlrev_b32 v9, 4, v9
        s_lshr_b32 s{S_T0}, s2, 5
        s_mul_i32 s{S_T0}, s{S_T0}, {16*288*16}
        s_and_b32 s{S_T1}, s2, 31
        s_mul_i32 s{S_T1}, s{S_T1}, 144
        s_add_u32 s{S_T0}, s{S_T0}, s{S_T1}
        s_add_u32 s{S_T0}, s{S_T0}, {R2}
        """)
        poll(a, c, lambda: a.I(f"buffer_load_dwordx4 {vr(G,4)}, v9, {sr(SRD_WS)}, s{S_T0} offen{c.ldmod}"), [G], 100, "g")
        a.I(f"""
        v_lshlrev_b32 v5, 3, v6
        ds_write_b64 v5, {vr(G,2)} offset:{GG}
        """)
    masked_range(a, c, 192, 480, 6, body_g, "gg")

def phaseD_poll(a, c, st):
    lab = c.lab("skip_final")
    G = 96
    a.I(f"s_cmp_ge_u32 s2, 64\ns_cbranch_scc1 {lab}")
    a.I(f"s_mul_i32 s{S_T0}, s2, 36864\ns_add_u32 s{S_T0}, s{S_T0}, {R4}")
    for k in range(1, 4): a.I(f"s_add_u32 s{S_TMPA + 0}, s{S_T0}, 0") if False else None
    a.I(f"""
    s_add_u32 s{S_T1}, s{S_T0}, 9216
    s_add_u32 s{S_T2}, s{S_T0}, 18432
    s_add_u32 s{S_TMPA}, s{S_T0}, 27648
    s_mul_i32 s{S_TMPB}, s2, 9
    s_add_u32 s{S_TMPB}, s{S_TMPB}, s{S_WAVE}
    s_lshl_b32 s{S_TMPB}, s{S_TMPB}, 1
    v_mov_b32 v7, s{S_TMPB}
    buffer_load_ushort v15, v7, {sr(SRD_X)}, 0 offen
    """)
    offs = [S_T0, S_T1, S_T2, S_TMPA]
    def loads():
        for k in range(4):
            a.I(f"buffer_load_dwordx4 {vr(G+4*k,4)}, v{V_T16}, {sr(SRD_WS)}, s{offs[k]} offen{c.ldmod}")
    poll(a, c, loads, [G, G + 4, G + 8, G + 12], 112, "f")
    a.I(f"""
    v_lshlrev_b32 v5, 3, v0
    v_add_u32 v5, {FB}, v5
    """)
    for k in range(4): a.I(f"ds_write_b64 v5, {vr(G+4*k,2)} offset:{4608*k}")
    barrier(a)
    st.stamp(a)
    a.I(f"""
    v_mul_u32_u24 v5, 72, v{V_LANE}
    s_lshl_b32 s{S_T1}, s{S_WAVE}, 3
    s_add_u32 s{S_T1}, s{S_T1}, {FB}
    v_add_u32 v5, s{S_T1}, v5
    """)
    for k in range(4): a.I(f"ds_read_b64 {vr(G+2*k,2)}, v5 offset:{4608*k}")
    a.I("s_waitcnt lgkmcnt(0)")
    SS, YY, T, E = 112, 113, 114, 115
    sum_chain(a, SS, [G, G + 2, G + 4, G + 6])
    sum_chain(a, YY, [G + 1, G + 3, G + 5, G + 7])
    for sh in (1, 2, 4, 8):
        a.I(f"v_add_f32 v{SS}, v{SS}, v{SS} row_shr:{sh}")
        a.I(f"v_add_f32 v{YY}, v{YY}, v{YY} row_shr:{sh}")
    for r in (SS, YY): a.I(f"v_add_f32 v{r}, v{r}, v{r} row_bcast:15 row_mask:0xa")
    for r in (SS, YY): a.I(f"v_add_f32 v{r}, v{r}, v{r} row_bcast:31 row_mask:0xc")
    round_bf16(a, SS, SS)
    round_bf16(a, YY, YY)
    a.I(f"""
    v_mul_f32 v{E}, {f32bits(-LOG2E):#x}, v{YY}
    v_exp_f32 v{E}, v{E}
    v_add_f32 v{E}, 1.0, v{E}
    v_rcp_f32 v{E}, v{E}
    v_mul_f32 v{T}, v{YY}, v{E}
    """)
    round_bf16(a, T, T)
    a.I(f"v_mul_f32 v{T}, v{SS}, v{T}")
    round_bf16(a, T, T)
    a.I(f"""
    v_lshlrev_b32 v{E}, 16, v15
    v_add_f32 v{T}, v{E}, v{T}
    """)
    to_bf16_lo(a, T, T)
    a.I(f"""
    s_mov_b32 exec_lo, 0
    s_mov_b32 exec_hi, 0x80000000
    buffer_store_short v{T}, v7, {sr(SRD_OUT)}, 0 offen
    s_mov_b64 exec, -1
    """)
    lab2 = c.lab("skip_epoch")
    a.I(f"""
    s_or_b32 s{S_T1}, s2, s{S_WAVE}
    s_cmp_lg_u32 s{S_T1}, 0
    s_cbranch_scc1 {lab2}
    v_mov_b32 v8, s{S_TAG}
    v_mov_b32 v9, s{S_TAG+1}
    v_mov_b32 v10, {EPOCH}
    s_mov_b64 exec, 1
    buffer_store_dwordx2 v[8:9], v10, {sr(SRD_WS)}, 0 offen sc1
    s_mov_b64 exec, -1
    """)
    a.L(lab2)
    a.L(lab)

def build(stamps=False, scmod=" sc1"):
    a = Asm(); c = Ctx(); c.stmod = scmod; c.ldmod = scmod
    st = Stamper(stamps); vm = Vm()
    a.raw(f".globl {KN}\n.p2align 8\n.type {KN},@function\n{KN}:")
    ex = "L_exit"
    prologue(a, c, ex)
    st.stamp(a)
    a.I(f"v_mov_b32 v12, {EPOCH}\nbuffer_load_dwordx2 v[10:11], v12, {sr(SRD_WS)}, 0 offen{scmod}"); vm.issue("E")
    issue_x(a); vm.issue("X")
    issue_wq(a); vm.issue("WQ0", "WQ1")
    issue_kv(a, "K"); vm.issue("K0", "K1", "K2", "K3")
    a.I(vm.wait("E"))
    a.I(f"""
    v_readfirstlane_b32 s{S_TAG}, v10
    v_readfirstlane_b32 s{S_TAG+1}, v11
    s_add_u32 s{S_TAG}, s{S_TAG}, 1
    s_addc_u32 s{S_TAG+1}, s{S_TAG+1}, 0
    """)
    ln_stage(a, c, vm.wait("X"))
    st.stamp(a)
    phaseA_q(a, c, [vm.wait("WQ0"), vm.wait("WQ1")])
    barrier(a)
    phaseA_publish_q(a, c)
    st.stamp(a)
    issue_kv(a, "V"); vm.issue("V0", "V1", "V2", "V3")
    gather_q_poll(a, c)
    barrier(a)
    st.stamp(a)
    class W:
        pass
    GUflag = {}
    def waitV_and_issue():
        issue_gu(a); vm.issue("GU0", "GU1", "GU2", "GU3", "GU4")
        return vm.wait("V3")
    phaseB_attn_fused(a, c, vm.wait("K3"), waitV_and_issue)
    barrier(a)
    phaseB_merge_publish(a, c)
    st.stamp(a)
    issue_wo(a); vm.issue("WO0", "WO1")
    issue_wd(a); vm.issue("WD0", "WD1", "WD2")
    phaseA_gu(a, c, [vm.wait(f"GU{i}") for i in range(5)])
    barrier(a)
    phaseA_publish_gu(a, c)
    st.stamp(a)
    gather_c_poll(a, c)
    barrier(a)
    st.stamp(a)
    phaseC_combine(a, c)
    phaseC_hcombine(a, c)
    barrier(a)
    phaseC_slabs(a, c, [vm.wait("WO0"), vm.wait("WO1")], [vm.wait("WD0"), vm.wait("WD1"), vm.wait("WD2")])
    barrier(a)
    phaseC_publish(a, c)
    st.stamp(a)
    phaseD_poll(a, c, st)
    st.stamp(a)
    a.L(ex)
    a.I("s_endpgm")
    out = HEADER + "\n; single fused kernel: 256 co-resident workgroups (one per CU), tagged hand-offs through d_ws\n"
    out += f"; @launch grid=(256,1,1) block=(576,1,1) lds={LDS_BYTES}\n"
    out += '.amdgcn_target "amdgcn-amd-amdhsa--gfx950"\n.text\n' + a.render()
    out += f""".section .rodata,"a"
.p2align 6
.amdhsa_kernel {KN}
  .amdhsa_next_free_vgpr 168
  .amdhsa_next_free_sgpr 100
  .amdhsa_accum_offset 168
  .amdhsa_group_segment_fixed_size 0
  .amdhsa_kernarg_size 96
  .amdhsa_user_sgpr_count 2
  .amdhsa_user_sgpr_kernarg_segment_ptr 1
  .amdhsa_system_sgpr_workgroup_id_x 1
.end_amdhsa_kernel
"""
    return out

def phaseB_attn_fused(a, c, waitK, between):
    lab = c.lab("skip_attn"); join = c.lab("join_attn")
    Q0, Q1 = 96, 100
    SC = 104; P_LO, P_HI = 112, 120; ACC = 128
    MX0, MX1, CC, MC0, MC1, L0, L1 = 144, 145, 146, 147, 148, 149, 150
    ST4 = 152
    a.C("attention: scores / softmax / PV for 16 keys per wave")
    a.I(f"s_cmp_ge_u32 s{S_WAVE}, 8\ns_cbranch_scc1 {lab}")
    a.I(f"""
    v_and_b32 v5, 15, v{V_LANE}
    v_lshlrev_b32 v5, 4, v5
    ds_read_b128 {vr(Q0,4)}, v5 offset:{QBUF}
    ds_read_b128 {vr(Q1,4)}, v5 offset:{QBUF+256}
    v_mov_b32 v{CC}, s{S_C}
    s_waitcnt lgkmcnt(0)
    """)
    a.I(waitK)
    for i in range(4):
        for h, q in ((0, Q0), (1, Q1)):
            for j in range(4):
                s2 = "0" if j == 0 else f"v{SC+h*4+i}"
                a.I(f"v_dot2_f32_bf16 v{SC+h*4+i}, v{D_K+4*i+j}, v{q+j}, {s2}")
    row_allreduce(a, [SC + k for k in range(8)])
    for h, mx in ((0, MX0), (1, MX1)):
        a.I(f"v_max3_f32 v{mx}, v{SC+4*h}, v{SC+4*h+1}, v{SC+4*h+2}")
        a.I(f"v_max_f32 v{mx}, v{mx}, v{SC+4*h+3}")
    for mx in (MX0, MX1): a.I(f"v_max_f32 v{mx}, v{mx}, v{mx} row_bcast:15 row_mask:0xa")
    for mx in (MX0, MX1): a.I(f"v_max_f32 v{mx}, v{mx}, v{mx} row_bcast:31 row_mask:0xc")
    a.I(f"v_readlane_b32 s{S_M0}, v{MX0}, 63\nv_readlane_b32 s{S_M1}, v{MX1}, 63")
    a.I(f"v_mul_f32 v{MC0}, s{S_M0}, v{CC}\nv_mul_f32 v{MC1}, s{S_M1}, v{CC}")
    for h, mc in ((0, MC0), (1, MC1)):
        for i in range(4):
            a.I(f"v_fma_f32 v{SC+4*h+i}, v{SC+4*h+i}, v{CC}, -v{mc}")
    for k in range(8): a.I(f"v_exp_f32 v{SC+k}, v{SC+k}")
    for k in range(8):
        a.I(f"v_cvt_pk_bf16_f32 v{P_LO+k}, v{SC+k}, 0")
        a.I(f"v_cvt_pk_bf16_f32 v{P_HI+k}, 0, v{SC+k}")
    for h, l in ((0, L0), (1, L1)):
        sum_chain(a, l, [SC + 4 * h + i for i in range(4)])
    for l in (L0, L1): a.I(f"v_add_f32 v{l}, v{l}, v{l} row_bcast:15 row_mask:0xa")
    for l in (L0, L1): a.I(f"v_add_f32 v{l}, v{l}, v{l} row_bcast:31 row_mask:0xc")
    a.I(between())
    for i in range(4):
        for h in range(2):
            for j in range(4):
                A0 = ACC + 8 * h + 2 * j
                a.I(f"v_dot2_f32_bf16 v{A0}, v{D_V+4*i+j}, v{P_LO+4*h+i}, " + ("0" if i == 0 else f"v{A0}"))
                a.I(f"v_dot2_f32_bf16 v{A0+1}, v{D_V+4*i+j}, v{P_HI+4*h+i}, " + ("0" if i == 0 else f"v{A0+1}"))
    reduce16_inwave(a, ACC)
    a.I(f"""
    s_lshl_b32 s{S_T0}, s{S_WAVE}, 10
    v_lshlrev_b32 v5, 2, v{V_LANE}
    v_add_u32 v5, s{S_T0}, v5
    """)
    for m in range(4): a.I(f"ds_write_b32 v5, v{ACC+4*m} offset:{OBUF+256*m}")
    a.I(f"""
    v_mov_b32 v{ST4}, v{MC0}
    v_mov_b32 v{ST4+1}, v{L0}
    v_mov_b32 v{ST4+2}, v{MC1}
    v_mov_b32 v{ST4+3}, v{L1}
    s_lshl_b32 s{S_T0}, s{S_WAVE}, 4
    v_mov_b32 v5, s{S_T0}
    s_mov_b32 exec_lo, 0
    s_mov_b32 exec_hi, 0x80000000
    ds_write_b128 v5, {vr(ST4,4)} offset:{STATS}
    s_mov_b64 exec, -1
    s_branch {join}
    """)
    a.L(lab)
    issue_gu(a)
    a.L(join)

if __name__ == "__main__":
    open("v2.s", "w").write(build(False))
    open("v2st.s", "w").write(build(True))
```

```python
import sys
sys.path.insert(0, "gen")
from asmlib import Asm
import phases
from phases import *

REF = open("recurrent_scan__sliding_block_cached__swiglu_ffn__decode.s.ref").read()
HEADER = "\n".join(l for l in REF.split(".amdgcn_target")[0].splitlines() if l.startswith(";") and "@launch" not in l and "Override" not in l and "grid=ceil" not in l)
KN = "recurrent_scan__sliding_block_cached__swiglu_ffn__decode_kernel"
EPOCH = 0x480000
STAMPS = 128 << 20
MAXPOLL = 4096

class Vm:
    def __init__(self): self.ops = []
    def issue(self, *names): self.ops += list(names)
    def wait(self, name):
        i = max(k for k, n in enumerate(self.ops) if n == name)
        return f"s_waitcnt vmcnt({len(self.ops) - 1 - i})"

SRD_DBG = 96
class DbgStamper:
    def __init__(self, on): self.on = on; self.n = 0
    def stamp(self, a):
        if not self.on: return
        lab = f"L_dstamp_{self.n}"
        a.I(f"""
        s_cmp_lg_u32 s{S_WAVE}, 0
        s_cbranch_scc1 {lab}
        s_memrealtime s[100:101]
        s_waitcnt lgkmcnt(0)
        """)
        if self.n == 0: a.I("s_not_b32 s100, s100")
        a.I(f"""
        v_mov_b32 v14, s100
        v_mov_b32 v13, {4 * self.n}
        s_mov_b64 exec, 1
        buffer_atomic_umax v14, v13, {sr(SRD_DBG)}, 0 offen
        s_mov_b64 exec, -1
        """)
        a.L(lab)
        self.n += 1

class Stamper:
    def __init__(self, on): self.on = on; self.n = 0
    def stamp(self, a):
        if not self.on: return
        lab = f"L_stamp_{self.n}"
        a.I(f"""
        s_cmp_lg_u32 s{S_WAVE}, 0
        s_cbranch_scc1 {lab}
        s_memrealtime s[94:95]
        s_waitcnt lgkmcnt(0)
        v_mov_b32 v14, s94
        s_lshl_b32 s93, s2, 6
        s_add_u32 s93, s93, {STAMPS + 4 * self.n}
        v_mov_b32 v13, s93
        s_mov_b64 exec, 1
        buffer_store_dword v14, v13, {sr(SRD_WS)}, 0 offen
        s_mov_b64 exec, -1
        """)
        a.L(lab)
        self.n += 1

def tagcheck(a, acc, gbases):
    first = True
    for g in gbases:
        for k, st in ((2, S_TAG), (3, S_TAG + 1)):
            if first:
                a.I(f"v_xor_b32 v{acc}, s{st}, v{g+k}"); first = False
            else:
                a.I(f"v_xor_b32 v5, s{st}, v{g+k}")
                a.I(f"v_or_b32 v{acc}, v{acc}, v5")

def poll(a, c, issue_loads, gbases, acc, name):
    top = c.lab("poll_" + name); done = c.lab("poll_done_" + name)
    a.I(f"s_mov_b32 s{S_T3}, 0")
    a.L(top)
    issue_loads()
    a.I(f"s_add_u32 s{S_T3}, s{S_T3}, 1")
    a.I("s_waitcnt vmcnt(0)")
    tagcheck(a, acc, gbases)
    a.I(f"""
    v_cmp_ne_u32 vcc, 0, v{acc}
    s_cbranch_vccz {done}
    s_cmp_lt_u32 s{S_T3}, {MAXPOLL}
    s_cbranch_scc1 {top}
    """)
    a.L(done)

def gather_q_poll(a, c):
    G = 96
    def body():
        a.I(f"""
        v_lshrrev_b32 v6, 5, v0
        v_lshlrev_b32 v6, 11, v6
        v_and_b32 v7, 31, v0
        v_lshl_add_u32 v6, v7, 4, v6
        s_lshl_b32 s{S_T0}, s{S_G}, 13
        """)
        if R1: a.I(f"s_add_u32 s{S_T0}, s{S_T0}, {R1}")
        def loads():
            for k in range(4):
                a.I(f"buffer_load_dwordx4 {vr(G+4*k,4)}, v6, {sr(SRD_WS)}, s{S_T0} offen" + (f" offset:{512*k}" if k else "") + c.ldmod)
        poll(a, c, loads, [G, G + 4, G + 8, G + 12], 112, "q")
        sum_chain(a, G, [G, G + 4, G + 8, G + 12])
        sum_chain(a, G + 1, [G + 1, G + 5, G + 9, G + 13])
        a.I(f"""
        v_cvt_pk_bf16_f32 v{G}, v{G}, v{G+1}
        v_lshlrev_b32 v5, 2, v0
        ds_write_b32 v5, v{G} offset:{QBUF}
        """)
    masked(a, c, 128, body, "gq")

def gather_c_poll(a, c):
    G = 96
    def body_o():
        a.I(f"""
        s_lshl_b32 s{S_T0}, s{S_G}, 15
        s_lshl_b32 s{S_T1}, s{S_S}, 11
        s_add_u32 s{S_T0}, s{S_T0}, s{S_T1}
        s_add_u32 s{S_T0}, s{S_T0}, {R3}
        """)
        poll(a, c, lambda: a.I(f"buffer_load_dwordx4 {vr(G,4)}, v{V_T16}, {sr(SRD_WS)}, s{S_T0} offen{c.ldmod}"), [G], 100, "o")
        a.I(f"""
        v_lshlrev_b32 v5, 3, v0
        ds_write_b64 v5, {vr(G,2)} offset:{OG}
        """)
    masked(a, c, 128, body_o, "go")
    def body_s():
        a.I(f"""
        s_lshl_b32 s{S_T0}, s{S_G}, 9
        s_lshr_b32 s{S_T1}, s{S_S}, 3
        s_lshl_b32 s{S_T1}, s{S_T1}, 4
        s_add_u32 s{S_T0}, s{S_T0}, s{S_T1}
        s_add_u32 s{S_T0}, s{S_T0}, {R3S}
        v_lshlrev_b32 v7, 5, v6
        """)
        poll(a, c, lambda: a.I(f"buffer_load_dwordx4 {vr(G,4)}, v7, {sr(SRD_WS)}, s{S_T0} offen{c.ldmod}"), [G], 100, "s")
        a.I(f"""
        v_lshlrev_b32 v5, 3, v6
        ds_write_b64 v5, {vr(G,2)} offset:{ST}
        """)
    masked_range(a, c, 128, 144, 6, body_s, "gs")
    def body_g():
        a.I(f"""
        v_mul_u32_u24 v7, 7282, v6
        v_lshrrev_b32 v7, 16, v7
        v_mul_u32_u24 v8, 9, v7
        v_sub_u32 v8, v6, v8
        v_lshrrev_b32 v9, 4, v7
        v_and_b32 v10, 15, v7
        v_lshlrev_b32 v9, 7, v9
        v_add_u32 v9, v9, v10
        v_mul_u32_u24 v9, 288, v9
        v_add_u32 v9, v9, v8
        v_lshlrev_b32 v9, 4, v9
        s_lshr_b32 s{S_T0}, s2, 5
        s_mul_i32 s{S_T0}, s{S_T0}, {16*288*16}
        s_and_b32 s{S_T1}, s2, 31
        s_mul_i32 s{S_T1}, s{S_T1}, 144
        s_add_u32 s{S_T0}, s{S_T0}, s{S_T1}
        s_add_u32 s{S_T0}, s{S_T0}, {R2}
        """)
        poll(a, c, lambda: a.I(f"buffer_load_dwordx4 {vr(G,4)}, v9, {sr(SRD_WS)}, s{S_T0} offen{c.ldmod}"), [G], 100, "g")
        a.I(f"""
        v_lshlrev_b32 v5, 3, v6
        ds_write_b64 v5, {vr(G,2)} offset:{GG}
        """)
    masked_range(a, c, 192, 480, 6, body_g, "gg")

def phaseD_poll(a, c, st):
    lab = c.lab("skip_final")
    G = 96
    a.I(f"s_cmp_ge_u32 s2, 64\ns_cbranch_scc1 {lab}")
    a.I(f"s_mul_i32 s{S_T0}, s2, 36864\ns_add_u32 s{S_T0}, s{S_T0}, {R4}")
    for k in range(1, 4): a.I(f"s_add_u32 s{S_TMPA + 0}, s{S_T0}, 0") if False else None
    a.I(f"""
    s_add_u32 s{S_T1}, s{S_T0}, 9216
    s_add_u32 s{S_T2}, s{S_T0}, 18432
    s_add_u32 s{S_TMPA}, s{S_T0}, 27648
    s_mul_i32 s{S_TMPB}, s2, 9
    s_add_u32 s{S_TMPB}, s{S_TMPB}, s{S_WAVE}
    s_lshl_b32 s{S_TMPB}, s{S_TMPB}, 1
    v_mov_b32 v7, s{S_TMPB}
    buffer_load_ushort v15, v7, {sr(SRD_X)}, 0 offen
    """)
    offs = [S_T0, S_T1, S_T2, S_TMPA]
    def loads():
        for k in range(4):
            a.I(f"buffer_load_dwordx4 {vr(G+4*k,4)}, v{V_T16}, {sr(SRD_WS)}, s{offs[k]} offen{c.ldmod}")
    poll(a, c, loads, [G, G + 4, G + 8, G + 12], 112, "f")
    a.I(f"""
    v_lshlrev_b32 v5, 3, v0
    v_add_u32 v5, {FB}, v5
    """)
    for k in range(4): a.I(f"ds_write_b64 v5, {vr(G+4*k,2)} offset:{4608*k}")
    barrier(a)
    st.stamp(a)
    a.I(f"""
    v_mul_u32_u24 v5, 72, v{V_LANE}
    s_lshl_b32 s{S_T1}, s{S_WAVE}, 3
    s_add_u32 s{S_T1}, s{S_T1}, {FB}
    v_add_u32 v5, s{S_T1}, v5
    """)
    for k in range(4): a.I(f"ds_read_b64 {vr(G+2*k,2)}, v5 offset:{4608*k}")
    a.I("s_waitcnt lgkmcnt(0)")
    SS, YY, T, E = 112, 113, 114, 115
    sum_chain(a, SS, [G, G + 2, G + 4, G + 6])
    sum_chain(a, YY, [G + 1, G + 3, G + 5, G + 7])
    for sh in (1, 2, 4, 8):
        a.I(f"v_add_f32 v{SS}, v{SS}, v{SS} row_shr:{sh}")
        a.I(f"v_add_f32 v{YY}, v{YY}, v{YY} row_shr:{sh}")
    for r in (SS, YY): a.I(f"v_add_f32 v{r}, v{r}, v{r} row_bcast:15 row_mask:0xa")
    for r in (SS, YY): a.I(f"v_add_f32 v{r}, v{r}, v{r} row_bcast:31 row_mask:0xc")
    round_bf16(a, SS, SS)
    round_bf16(a, YY, YY)
    a.I(f"""
    v_mul_f32 v{E}, {f32bits(-LOG2E):#x}, v{YY}
    v_exp_f32 v{E}, v{E}
    v_add_f32 v{E}, 1.0, v{E}
    v_rcp_f32 v{E}, v{E}
    v_mul_f32 v{T}, v{YY}, v{E}
    """)
    round_bf16(a, T, T)
    a.I(f"v_mul_f32 v{T}, v{SS}, v{T}")
    round_bf16(a, T, T)
    a.I(f"""
    v_lshlrev_b32 v{E}, 16, v15
    v_add_f32 v{T}, v{E}, v{T}
    """)
    to_bf16_lo(a, T, T)
    a.I(f"""
    s_mov_b32 exec_lo, 0
    s_mov_b32 exec_hi, 0x80000000
    buffer_store_short v{T}, v7, {sr(SRD_OUT)}, 0 offen
    s_mov_b64 exec, -1
    """)
    lab2 = c.lab("skip_epoch")
    a.I(f"""
    s_or_b32 s{S_T1}, s2, s{S_WAVE}
    s_cmp_lg_u32 s{S_T1}, 0
    s_cbranch_scc1 {lab2}
    v_mov_b32 v8, s{S_TAG}
    v_mov_b32 v9, s{S_TAG+1}
    v_mov_b32 v10, {EPOCH}
    s_mov_b64 exec, 1
    buffer_store_dwordx2 v[8:9], v10, {sr(SRD_WS)}, 0 offen sc1
    s_mov_b64 exec, -1
    """)
    a.L(lab2)
    a.L(lab)

def build(stamps=False, scmod=" sc1"):
    a = Asm(); c = Ctx(); c.stmod = scmod; c.ldmod = scmod
    st = DbgStamper(True) if stamps == "dbg" else Stamper(stamps); vm = Vm()
    a.raw(f".globl {KN}\n.p2align 8\n.type {KN},@function\n{KN}:")
    ex = "L_exit"
    prologue(a, c, ex)
    if stamps == "dbg":
        a.I(f"s_mov_b32 s{SRD_DBG}, s36\ns_mov_b32 s{SRD_DBG+1}, s37\ns_mov_b32 s{SRD_DBG+2}, 256\ns_mov_b32 s{SRD_DBG+3}, 0x00020000")
    st.stamp(a)
    a.I(f"v_mov_b32 v12, {EPOCH}\nbuffer_load_dwordx2 v[10:11], v12, {sr(SRD_WS)}, 0 offen{scmod}"); vm.issue("E")
    issue_x(a); vm.issue("X")
    issue_wq(a); vm.issue("WQ0", "WQ1")
    issue_kv(a, "K"); vm.issue("K0", "K1", "K2", "K3")
    a.I(vm.wait("E"))
    a.I(f"""
    v_readfirstlane_b32 s{S_TAG}, v10
    v_readfirstlane_b32 s{S_TAG+1}, v11
    s_add_u32 s{S_TAG}, s{S_TAG}, 1
    s_addc_u32 s{S_TAG+1}, s{S_TAG+1}, 0
    """)
    ln_stage(a, c, vm.wait("X"))
    st.stamp(a)
    phaseA_q(a, c, [vm.wait("WQ0"), vm.wait("WQ1")])
    barrier(a)
    phaseA_publish_q(a, c)
    st.stamp(a)
    issue_kv(a, "V"); vm.issue("V0", "V1", "V2", "V3")
    gather_q_poll(a, c)
    barrier(a)
    st.stamp(a)
    class W:
        pass
    GUflag = {}
    def waitV_and_issue():
        issue_gu(a); vm.issue("GU0", "GU1", "GU2", "GU3", "GU4")
        return vm.wait("V3")
    phaseB_attn_fused(a, c, vm.wait("K3"), waitV_and_issue)
    barrier(a)
    phaseB_merge_publish(a, c)
    st.stamp(a)
    issue_wo(a); vm.issue("WO0", "WO1")
    issue_wd(a); vm.issue("WD0", "WD1", "WD2")
    phaseA_gu(a, c, [vm.wait(f"GU{i}") for i in range(5)])
    barrier(a)
    phaseA_publish_gu(a, c)
    st.stamp(a)
    gather_c_poll(a, c)
    barrier(a)
    st.stamp(a)
    phaseC_combine(a, c)
    phaseC_hcombine(a, c)
    barrier(a)
    phaseC_slabs(a, c, [vm.wait("WO0"), vm.wait("WO1")], [vm.wait("WD0"), vm.wait("WD1"), vm.wait("WD2")])
    barrier(a)
    phaseC_publish(a, c)
    st.stamp(a)
    phaseD_poll(a, c, st)
    st.stamp(a)
    a.L(ex)
    a.I("s_endpgm")
    out = HEADER + "\n; single fused kernel: 256 co-resident workgroups (one per CU), tagged hand-offs through d_ws\n"
    out += f"; @launch grid=(256,1,1) block=(576,1,1) lds={LDS_BYTES}\n"
    out += '.amdgcn_target "amdgcn-amd-amdhsa--gfx950"\n.text\n' + a.render()
    out += f""".section .rodata,"a"
.p2align 6
.amdhsa_kernel {KN}
  .amdhsa_next_free_vgpr 168
  .amdhsa_next_free_sgpr 102
  .amdhsa_accum_offset 168
  .amdhsa_group_segment_fixed_size 0
  .amdhsa_kernarg_size 96
  .amdhsa_user_sgpr_count 2
  .amdhsa_user_sgpr_kernarg_segment_ptr 1
  .amdhsa_system_sgpr_workgroup_id_x 1
.end_amdhsa_kernel
"""
    return out

def phaseB_attn_fused(a, c, waitK, between):
    lab = c.lab("skip_attn"); join = c.lab("join_attn")
    Q0, Q1 = 96, 100
    SC = 104; P_LO, P_HI = 112, 120; ACC = 128
    MX0, MX1, CC, MC0, MC1, L0, L1 = 144, 145, 146, 147, 148, 149, 150
    ST4 = 152
    a.C("attention: scores / softmax / PV for 16 keys per wave")
    a.I(f"s_cmp_ge_u32 s{S_WAVE}, 8\ns_cbranch_scc1 {lab}")
    a.I(f"""
    v_and_b32 v5, 15, v{V_LANE}
    v_lshlrev_b32 v5, 4, v5
    ds_read_b128 {vr(Q0,4)}, v5 offset:{QBUF}
    ds_read_b128 {vr(Q1,4)}, v5 offset:{QBUF+256}
    v_mov_b32 v{CC}, s{S_C}
    s_waitcnt lgkmcnt(0)
    """)
    a.I(waitK)
    for i in range(4):
        for h, q in ((0, Q0), (1, Q1)):
            for j in range(4):
                s2 = "0" if j == 0 else f"v{SC+h*4+i}"
                a.I(f"v_dot2_f32_bf16 v{SC+h*4+i}, v{D_K+4*i+j}, v{q+j}, {s2}")
    row_allreduce(a, [SC + k for k in range(8)])
    for h, mx in ((0, MX0), (1, MX1)):
        a.I(f"v_max3_f32 v{mx}, v{SC+4*h}, v{SC+4*h+1}, v{SC+4*h+2}")
        a.I(f"v_max_f32 v{mx}, v{mx}, v{SC+4*h+3}")
    for mx in (MX0, MX1): a.I(f"v_max_f32 v{mx}, v{mx}, v{mx} row_bcast:15 row_mask:0xa")
    for mx in (MX0, MX1): a.I(f"v_max_f32 v{mx}, v{mx}, v{mx} row_bcast:31 row_mask:0xc")
    a.I(f"v_readlane_b32 s{S_M0}, v{MX0}, 63\nv_readlane_b32 s{S_M1}, v{MX1}, 63")
    a.I(f"v_mul_f32 v{MC0}, s{S_M0}, v{CC}\nv_mul_f32 v{MC1}, s{S_M1}, v{CC}")
    for h, mc in ((0, MC0), (1, MC1)):
        for i in range(4):
            a.I(f"v_fma_f32 v{SC+4*h+i}, v{SC+4*h+i}, v{CC}, -v{mc}")
    for k in range(8): a.I(f"v_exp_f32 v{SC+k}, v{SC+k}")
    for k in range(8):
        a.I(f"v_cvt_pk_bf16_f32 v{P_LO+k}, v{SC+k}, 0")
        a.I(f"v_cvt_pk_bf16_f32 v{P_HI+k}, 0, v{SC+k}")
    for h, l in ((0, L0), (1, L1)):
        sum_chain(a, l, [SC + 4 * h + i for i in range(4)])
    for l in (L0, L1): a.I(f"v_add_f32 v{l}, v{l}, v{l} row_bcast:15 row_mask:0xa")
    for l in (L0, L1): a.I(f"v_add_f32 v{l}, v{l}, v{l} row_bcast:31 row_mask:0xc")
    a.I(between())
    for i in range(4):
        for h in range(2):
            for j in range(4):
                A0 = ACC + 8 * h + 2 * j
                a.I(f"v_dot2_f32_bf16 v{A0}, v{D_V+4*i+j}, v{P_LO+4*h+i}, " + ("0" if i == 0 else f"v{A0}"))
                a.I(f"v_dot2_f32_bf16 v{A0+1}, v{D_V+4*i+j}, v{P_HI+4*h+i}, " + ("0" if i == 0 else f"v{A0+1}"))
    reduce16_inwave(a, ACC)
    a.I(f"""
    s_lshl_b32 s{S_T0}, s{S_WAVE}, 10
    v_lshlrev_b32 v5, 2, v{V_LANE}
    v_add_u32 v5, s{S_T0}, v5
    """)
    for m in range(4): a.I(f"ds_write_b32 v5, v{ACC+4*m} offset:{OBUF+256*m}")
    a.I(f"""
    v_mov_b32 v{ST4}, v{MC0}
    v_mov_b32 v{ST4+1}, v{L0}
    v_mov_b32 v{ST4+2}, v{MC1}
    v_mov_b32 v{ST4+3}, v{L1}
    s_lshl_b32 s{S_T0}, s{S_WAVE}, 4
    v_mov_b32 v5, s{S_T0}
    s_mov_b32 exec_lo, 0
    s_mov_b32 exec_hi, 0x80000000
    ds_write_b128 v5, {vr(ST4,4)} offset:{STATS}
    s_mov_b64 exec, -1
    s_branch {join}
    """)
    a.L(lab)
    issue_gu(a)
    a.L(join)

if __name__ == "__main__":
    open("v2.s", "w").write(build(False))
    open("v2st.s", "w").write(build(True))
    open("v2dbg.s", "w").write(build("dbg"))
```

```python
import sys
sys.path.insert(0, "gen")
from asmlib import Asm
import phases
from phases import *

REF = open("recurrent_scan__sliding_block_cached__swiglu_ffn__decode.s.ref").read()
HEADER = "\n".join(l for l in REF.split(".amdgcn_target")[0].splitlines() if l.startswith(";") and "@launch" not in l and "Override" not in l and "grid=ceil" not in l)
KN = "recurrent_scan__sliding_block_cached__swiglu_ffn__decode_kernel"
EPOCH = 0x480000
STAMPS = 128 << 20
MAXPOLL = 4096

class Vm:
    def __init__(self): self.ops = []
    def issue(self, *names): self.ops += list(names)
    def wait(self, name):
        i = max(k for k, n in enumerate(self.ops) if n == name)
        return f"s_waitcnt vmcnt({len(self.ops) - 1 - i})"

SRD_DBG = 96
class DbgStamper:
    KEEP = [0, 2, 3, 4, 6, 7, 8, 9]
    def __init__(self, on): self.on = on; self.n = 0
    def stamp(self, a):
        n = self.n; self.n += 1
        if not self.on or n not in self.KEEP: return
        slot = self.KEEP.index(n)
        lab = f"L_dstamp_{n}"
        a.I(f"""
        s_cmp_lg_u32 s{S_WAVE}, 0
        s_cbranch_scc1 {lab}
        s_and_b32 s100, s2, 0xff
        s_cmp_eq_u32 s100, 0
        s_cselect_b32 s101, 0, 32
        s_cbranch_scc1 {lab}_go
        s_cmp_lg_u32 s100, 255
        s_cbranch_scc1 {lab}
        """)
        a.L(lab + "_go")
        a.I(f"""
        s_memrealtime s[94:95]
        s_waitcnt lgkmcnt(0)
        v_mov_b32 v14, s94
        v_mov_b32 v13, s101
        s_mov_b64 exec, 1
        buffer_store_dword v14, v13, {sr(SRD_DBG)}, 0 offen offset:{4*slot}
        s_mov_b64 exec, -1
        """)
        a.L(lab)

class Stamper:
    def __init__(self, on): self.on = on; self.n = 0
    def stamp(self, a):
        if not self.on: return
        lab = f"L_stamp_{self.n}"
        a.I(f"""
        s_cmp_lg_u32 s{S_WAVE}, 0
        s_cbranch_scc1 {lab}
        s_memrealtime s[94:95]
        s_waitcnt lgkmcnt(0)
        v_mov_b32 v14, s94
        s_lshl_b32 s93, s2, 6
        s_add_u32 s93, s93, {STAMPS + 4 * self.n}
        v_mov_b32 v13, s93
        s_mov_b64 exec, 1
        buffer_store_dword v14, v13, {sr(SRD_WS)}, 0 offen
        s_mov_b64 exec, -1
        """)
        a.L(lab)
        self.n += 1

def tagcheck(a, acc, gbases):
    first = True
    for g in gbases:
        for k, st in ((2, S_TAG), (3, S_TAG + 1)):
            if first:
                a.I(f"v_xor_b32 v{acc}, s{st}, v{g+k}"); first = False
            else:
                a.I(f"v_xor_b32 v5, s{st}, v{g+k}")
                a.I(f"v_or_b32 v{acc}, v{acc}, v5")

def poll(a, c, issue_loads, gbases, acc, name):
    top = c.lab("poll_" + name); done = c.lab("poll_done_" + name)
    a.I(f"s_mov_b32 s{S_T3}, 0")
    a.L(top)
    issue_loads()
    a.I(f"s_add_u32 s{S_T3}, s{S_T3}, 1")
    a.I("s_waitcnt vmcnt(0)")
    tagcheck(a, acc, gbases)
    a.I(f"""
    v_cmp_ne_u32 vcc, 0, v{acc}
    s_cbranch_vccz {done}
    s_cmp_lt_u32 s{S_T3}, {MAXPOLL}
    s_cbranch_scc1 {top}
    """)
    a.L(done)

def gather_q_poll(a, c):
    G = 96
    def body():
        a.I(f"""
        v_lshrrev_b32 v6, 5, v0
        v_lshlrev_b32 v6, 11, v6
        v_and_b32 v7, 31, v0
        v_lshl_add_u32 v6, v7, 4, v6
        s_lshl_b32 s{S_T0}, s{S_G}, 13
        """)
        if R1: a.I(f"s_add_u32 s{S_T0}, s{S_T0}, {R1}")
        def loads():
            for k in range(4):
                a.I(f"buffer_load_dwordx4 {vr(G+4*k,4)}, v6, {sr(SRD_WS)}, s{S_T0} offen" + (f" offset:{512*k}" if k else "") + c.ldmod)
        poll(a, c, loads, [G, G + 4, G + 8, G + 12], 112, "q")
        sum_chain(a, G, [G, G + 4, G + 8, G + 12])
        sum_chain(a, G + 1, [G + 1, G + 5, G + 9, G + 13])
        a.I(f"""
        v_cvt_pk_bf16_f32 v{G}, v{G}, v{G+1}
        v_lshlrev_b32 v5, 2, v0
        ds_write_b32 v5, v{G} offset:{QBUF}
        """)
    masked(a, c, 128, body, "gq")

def gather_c_poll(a, c):
    G = 96
    def body_o():
        a.I(f"""
        s_lshl_b32 s{S_T0}, s{S_G}, 15
        s_lshl_b32 s{S_T1}, s{S_S}, 11
        s_add_u32 s{S_T0}, s{S_T0}, s{S_T1}
        s_add_u32 s{S_T0}, s{S_T0}, {R3}
        """)
        poll(a, c, lambda: a.I(f"buffer_load_dwordx4 {vr(G,4)}, v{V_T16}, {sr(SRD_WS)}, s{S_T0} offen{c.ldmod}"), [G], 100, "o")
        a.I(f"""
        v_lshlrev_b32 v5, 3, v0
        ds_write_b64 v5, {vr(G,2)} offset:{OG}
        """)
    masked(a, c, 128, body_o, "go")
    def body_s():
        a.I(f"""
        s_lshl_b32 s{S_T0}, s{S_G}, 9
        s_lshr_b32 s{S_T1}, s{S_S}, 3
        s_lshl_b32 s{S_T1}, s{S_T1}, 4
        s_add_u32 s{S_T0}, s{S_T0}, s{S_T1}
        s_add_u32 s{S_T0}, s{S_T0}, {R3S}
        v_lshlrev_b32 v7, 5, v6
        """)
        poll(a, c, lambda: a.I(f"buffer_load_dwordx4 {vr(G,4)}, v7, {sr(SRD_WS)}, s{S_T0} offen{c.ldmod}"), [G], 100, "s")
        a.I(f"""
        v_lshlrev_b32 v5, 3, v6
        ds_write_b64 v5, {vr(G,2)} offset:{ST}
        """)
    masked_range(a, c, 128, 144, 6, body_s, "gs")
    def body_g():
        a.I(f"""
        v_mul_u32_u24 v7, 7282, v6
        v_lshrrev_b32 v7, 16, v7
        v_mul_u32_u24 v8, 9, v7
        v_sub_u32 v8, v6, v8
        v_lshrrev_b32 v9, 4, v7
        v_and_b32 v10, 15, v7
        v_lshlrev_b32 v9, 7, v9
        v_add_u32 v9, v9, v10
        v_mul_u32_u24 v9, 288, v9
        v_add_u32 v9, v9, v8
        v_lshlrev_b32 v9, 4, v9
        s_lshr_b32 s{S_T0}, s2, 5
        s_mul_i32 s{S_T0}, s{S_T0}, {16*288*16}
        s_and_b32 s{S_T1}, s2, 31
        s_mul_i32 s{S_T1}, s{S_T1}, 144
        s_add_u32 s{S_T0}, s{S_T0}, s{S_T1}
        s_add_u32 s{S_T0}, s{S_T0}, {R2}
        """)
        poll(a, c, lambda: a.I(f"buffer_load_dwordx4 {vr(G,4)}, v9, {sr(SRD_WS)}, s{S_T0} offen{c.ldmod}"), [G], 100, "g")
        a.I(f"""
        v_lshlrev_b32 v5, 3, v6
        ds_write_b64 v5, {vr(G,2)} offset:{GG}
        """)
    masked_range(a, c, 192, 480, 6, body_g, "gg")

def phaseD_poll(a, c, st):
    lab = c.lab("skip_final")
    G = 96
    a.I(f"s_cmp_ge_u32 s2, 64\ns_cbranch_scc1 {lab}")
    a.I(f"s_mul_i32 s{S_T0}, s2, 36864\ns_add_u32 s{S_T0}, s{S_T0}, {R4}")
    for k in range(1, 4): a.I(f"s_add_u32 s{S_TMPA + 0}, s{S_T0}, 0") if False else None
    a.I(f"""
    s_add_u32 s{S_T1}, s{S_T0}, 9216
    s_add_u32 s{S_T2}, s{S_T0}, 18432
    s_add_u32 s{S_TMPA}, s{S_T0}, 27648
    s_mul_i32 s{S_TMPB}, s2, 9
    s_add_u32 s{S_TMPB}, s{S_TMPB}, s{S_WAVE}
    s_lshl_b32 s{S_TMPB}, s{S_TMPB}, 1
    v_mov_b32 v7, s{S_TMPB}
    buffer_load_ushort v15, v7, {sr(SRD_X)}, 0 offen
    """)
    offs = [S_T0, S_T1, S_T2, S_TMPA]
    def loads():
        for k in range(4):
            a.I(f"buffer_load_dwordx4 {vr(G+4*k,4)}, v{V_T16}, {sr(SRD_WS)}, s{offs[k]} offen{c.ldmod}")
    poll(a, c, loads, [G, G + 4, G + 8, G + 12], 112, "f")
    a.I(f"""
    v_lshlrev_b32 v5, 3, v0
    v_add_u32 v5, {FB}, v5
    """)
    for k in range(4): a.I(f"ds_write_b64 v5, {vr(G+4*k,2)} offset:{4608*k}")
    barrier(a)
    st.stamp(a)
    a.I(f"""
    v_mul_u32_u24 v5, 72, v{V_LANE}
    s_lshl_b32 s{S_T1}, s{S_WAVE}, 3
    s_add_u32 s{S_T1}, s{S_T1}, {FB}
    v_add_u32 v5, s{S_T1}, v5
    """)
    for k in range(4): a.I(f"ds_read_b64 {vr(G+2*k,2)}, v5 offset:{4608*k}")
    a.I("s_waitcnt lgkmcnt(0)")
    SS, YY, T, E = 112, 113, 114, 115
    sum_chain(a, SS, [G, G + 2, G + 4, G + 6])
    sum_chain(a, YY, [G + 1, G + 3, G + 5, G + 7])
    for sh in (1, 2, 4, 8):
        a.I(f"v_add_f32 v{SS}, v{SS}, v{SS} row_shr:{sh}")
        a.I(f"v_add_f32 v{YY}, v{YY}, v{YY} row_shr:{sh}")
    for r in (SS, YY): a.I(f"v_add_f32 v{r}, v{r}, v{r} row_bcast:15 row_mask:0xa")
    for r in (SS, YY): a.I(f"v_add_f32 v{r}, v{r}, v{r} row_bcast:31 row_mask:0xc")
    round_bf16(a, SS, SS)
    round_bf16(a, YY, YY)
    a.I(f"""
    v_mul_f32 v{E}, {f32bits(-LOG2E):#x}, v{YY}
    v_exp_f32 v{E}, v{E}
    v_add_f32 v{E}, 1.0, v{E}
    v_rcp_f32 v{E}, v{E}
    v_mul_f32 v{T}, v{YY}, v{E}
    """)
    round_bf16(a, T, T)
    a.I(f"v_mul_f32 v{T}, v{SS}, v{T}")
    round_bf16(a, T, T)
    a.I(f"""
    v_lshlrev_b32 v{E}, 16, v15
    v_add_f32 v{T}, v{E}, v{T}
    """)
    to_bf16_lo(a, T, T)
    a.I(f"""
    s_mov_b32 exec_lo, 0
    s_mov_b32 exec_hi, 0x80000000
    buffer_store_short v{T}, v7, {sr(SRD_OUT)}, 0 offen
    s_mov_b64 exec, -1
    """)
    lab2 = c.lab("skip_epoch")
    a.I(f"""
    s_or_b32 s{S_T1}, s2, s{S_WAVE}
    s_cmp_lg_u32 s{S_T1}, 0
    s_cbranch_scc1 {lab2}
    v_mov_b32 v8, s{S_TAG}
    v_mov_b32 v9, s{S_TAG+1}
    v_mov_b32 v10, {EPOCH}
    s_mov_b64 exec, 1
    buffer_store_dwordx2 v[8:9], v10, {sr(SRD_WS)}, 0 offen sc1
    s_mov_b64 exec, -1
    """)
    a.L(lab2)
    a.L(lab)

def build(stamps=False, scmod=" sc1"):
    a = Asm(); c = Ctx(); c.stmod = scmod; c.ldmod = scmod
    st = DbgStamper(True) if stamps == "dbg" else Stamper(stamps); vm = Vm()
    a.raw(f".globl {KN}\n.p2align 8\n.type {KN},@function\n{KN}:")
    ex = "L_exit"
    prologue(a, c, ex)
    if stamps == "dbg":
        a.I(f"s_mov_b32 s{SRD_DBG}, s36\ns_mov_b32 s{SRD_DBG+1}, s37\ns_mov_b32 s{SRD_DBG+2}, 256\ns_mov_b32 s{SRD_DBG+3}, 0x00020000")
    st.stamp(a)
    a.I(f"v_mov_b32 v12, {EPOCH}\nbuffer_load_dwordx2 v[10:11], v12, {sr(SRD_WS)}, 0 offen{scmod}"); vm.issue("E")
    issue_x(a); vm.issue("X")
    issue_wq(a); vm.issue("WQ0", "WQ1")
    issue_kv(a, "K"); vm.issue("K0", "K1", "K2", "K3")
    a.I(vm.wait("E"))
    a.I(f"""
    v_readfirstlane_b32 s{S_TAG}, v10
    v_readfirstlane_b32 s{S_TAG+1}, v11
    s_add_u32 s{S_TAG}, s{S_TAG}, 1
    s_addc_u32 s{S_TAG+1}, s{S_TAG+1}, 0
    """)
    ln_stage(a, c, vm.wait("X"))
    st.stamp(a)
    phaseA_q(a, c, [vm.wait("WQ0"), vm.wait("WQ1")])
    barrier(a)
    phaseA_publish_q(a, c)
    st.stamp(a)
    issue_kv(a, "V"); vm.issue("V0", "V1", "V2", "V3")
    gather_q_poll(a, c)
    barrier(a)
    st.stamp(a)
    class W:
        pass
    GUflag = {}
    def waitV_and_issue():
        issue_gu(a); vm.issue("GU0", "GU1", "GU2", "GU3", "GU4")
        return vm.wait("V3")
    phaseB_attn_fused(a, c, vm.wait("K3"), waitV_and_issue)
    barrier(a)
    phaseB_merge_publish(a, c)
    st.stamp(a)
    issue_wo(a); vm.issue("WO0", "WO1")
    issue_wd(a); vm.issue("WD0", "WD1", "WD2")
    phaseA_gu(a, c, [vm.wait(f"GU{i}") for i in range(5)])
    barrier(a)
    phaseA_publish_gu(a, c)
    st.stamp(a)
    gather_c_poll(a, c)
    barrier(a)
    st.stamp(a)
    phaseC_combine(a, c)
    phaseC_hcombine(a, c)
    barrier(a)
    phaseC_slabs(a, c, [vm.wait("WO0"), vm.wait("WO1")], [vm.wait("WD0"), vm.wait("WD1"), vm.wait("WD2")])
    barrier(a)
    phaseC_publish(a, c)
    st.stamp(a)
    phaseD_poll(a, c, st)
    st.stamp(a)
    a.L(ex)
    a.I("s_endpgm")
    out = HEADER + "\n; single fused kernel: 256 co-resident workgroups (one per CU), tagged hand-offs through d_ws\n"
    out += f"; @launch grid=(256,1,1) block=(576,1,1) lds={LDS_BYTES}\n"
    out += '.amdgcn_target "amdgcn-amd-amdhsa--gfx950"\n.text\n' + a.render()
    out += f""".section .rodata,"a"
.p2align 6
.amdhsa_kernel {KN}
  .amdhsa_next_free_vgpr 168
  .amdhsa_next_free_sgpr 102
  .amdhsa_accum_offset 168
  .amdhsa_group_segment_fixed_size 0
  .amdhsa_kernarg_size 96
  .amdhsa_user_sgpr_count 2
  .amdhsa_user_sgpr_kernarg_segment_ptr 1
  .amdhsa_system_sgpr_workgroup_id_x 1
.end_amdhsa_kernel
"""
    return out

def phaseB_attn_fused(a, c, waitK, between):
    lab = c.lab("skip_attn"); join = c.lab("join_attn")
    Q0, Q1 = 96, 100
    SC = 104; P_LO, P_HI = 112, 120; ACC = 128
    MX0, MX1, CC, MC0, MC1, L0, L1 = 144, 145, 146, 147, 148, 149, 150
    ST4 = 152
    a.C("attention: scores / softmax / PV for 16 keys per wave")
    a.I(f"s_cmp_ge_u32 s{S_WAVE}, 8\ns_cbranch_scc1 {lab}")
    a.I(f"""
    v_and_b32 v5, 15, v{V_LANE}
    v_lshlrev_b32 v5, 4, v5
    ds_read_b128 {vr(Q0,4)}, v5 offset:{QBUF}
    ds_read_b128 {vr(Q1,4)}, v5 offset:{QBUF+256}
    v_mov_b32 v{CC}, s{S_C}
    s_waitcnt lgkmcnt(0)
    """)
    a.I(waitK)
    for i in range(4):
        for h, q in ((0, Q0), (1, Q1)):
            for j in range(4):
                s2 = "0" if j == 0 else f"v{SC+h*4+i}"
                a.I(f"v_dot2_f32_bf16 v{SC+h*4+i}, v{D_K+4*i+j}, v{q+j}, {s2}")
    row_allreduce(a, [SC + k for k in range(8)])
    for h, mx in ((0, MX0), (1, MX1)):
        a.I(f"v_max3_f32 v{mx}, v{SC+4*h}, v{SC+4*h+1}, v{SC+4*h+2}")
        a.I(f"v_max_f32 v{mx}, v{mx}, v{SC+4*h+3}")
    for mx in (MX0, MX1): a.I(f"v_max_f32 v{mx}, v{mx}, v{mx} row_bcast:15 row_mask:0xa")
    for mx in (MX0, MX1): a.I(f"v_max_f32 v{mx}, v{mx}, v{mx} row_bcast:31 row_mask:0xc")
    a.I(f"v_readlane_b32 s{S_M0}, v{MX0}, 63\nv_readlane_b32 s{S_M1}, v{MX1}, 63")
    a.I(f"v_mul_f32 v{MC0}, s{S_M0}, v{CC}\nv_mul_f32 v{MC1}, s{S_M1}, v{CC}")
    for h, mc in ((0, MC0), (1, MC1)):
        for i in range(4):
            a.I(f"v_fma_f32 v{SC+4*h+i}, v{SC+4*h+i}, v{CC}, -v{mc}")
    for k in range(8): a.I(f"v_exp_f32 v{SC+k}, v{SC+k}")
    for k in range(8):
        a.I(f"v_cvt_pk_bf16_f32 v{P_LO+k}, v{SC+k}, 0")
        a.I(f"v_cvt_pk_bf16_f32 v{P_HI+k}, 0, v{SC+k}")
    for h, l in ((0, L0), (1, L1)):
        sum_chain(a, l, [SC + 4 * h + i for i in range(4)])
    for l in (L0, L1): a.I(f"v_add_f32 v{l}, v{l}, v{l} row_bcast:15 row_mask:0xa")
    for l in (L0, L1): a.I(f"v_add_f32 v{l}, v{l}, v{l} row_bcast:31 row_mask:0xc")
    a.I(between())
    for i in range(4):
        for h in range(2):
            for j in range(4):
                A0 = ACC + 8 * h + 2 * j
                a.I(f"v_dot2_f32_bf16 v{A0}, v{D_V+4*i+j}, v{P_LO+4*h+i}, " + ("0" if i == 0 else f"v{A0}"))
                a.I(f"v_dot2_f32_bf16 v{A0+1}, v{D_V+4*i+j}, v{P_HI+4*h+i}, " + ("0" if i == 0 else f"v{A0+1}"))
    reduce16_inwave(a, ACC)
    a.I(f"""
    s_lshl_b32 s{S_T0}, s{S_WAVE}, 10
    v_lshlrev_b32 v5, 2, v{V_LANE}
    v_add_u32 v5, s{S_T0}, v5
    """)
    for m in range(4): a.I(f"ds_write_b32 v5, v{ACC+4*m} offset:{OBUF+256*m}")
    a.I(f"""
    v_mov_b32 v{ST4}, v{MC0}
    v_mov_b32 v{ST4+1}, v{L0}
    v_mov_b32 v{ST4+2}, v{MC1}
    v_mov_b32 v{ST4+3}, v{L1}
    s_lshl_b32 s{S_T0}, s{S_WAVE}, 4
    v_mov_b32 v5, s{S_T0}
    s_mov_b32 exec_lo, 0
    s_mov_b32 exec_hi, 0x80000000
    ds_write_b128 v5, {vr(ST4,4)} offset:{STATS}
    s_mov_b64 exec, -1
    s_branch {join}
    """)
    a.L(lab)
    issue_gu(a)
    a.L(join)

if __name__ == "__main__":
    open("v2.s", "w").write(build(False))
    open("v2st.s", "w").write(build(True))
    open("v2dbg.s", "w").write(build("dbg"))
```

```python
import sys
sys.path.insert(0, "gen")
from asmlib import Asm
from phases import (f32bits, SCALE_LOG2E, LOG2E, v, vr, s, sr, wave_reduce_to63, row_allreduce, to_bf16_lo, round_bf16,
                    dot_slab, sum_chain, reduce8_inwave, reduce16_inwave, barrier)

REF = open("recurrent_scan__sliding_block_cached__swiglu_ffn__decode.s.ref").read()
HEADER = "\n".join(l for l in REF.split(".amdgcn_target")[0].splitlines() if l.startswith(";") and "@launch" not in l and "Override" not in l and "grid=ceil" not in l)
KN = "recurrent_scan__sliding_block_cached__swiglu_ffn__decode_kernel"

LN_RED1, LN_RED2 = 0, 64
XNBUF = 128
QPART = 2816
GUPART = 5120
OG = 23552
ST = 24576
GG = 24704
COEFO = 27008
COEFH = 27072
PS = 27264
PY = 45696
FB = 5120
LDS_BYTES = 64128 + 1408
QBUF = 0
OBUF = 1024
STATS = 9216
EPOCH = 0x0
R1 = 0x1000
R2 = 0x21000
R3 = 0x141000
R3S = 0x1C1000
R4 = 0x200000
WS_BYTES = 268435456
STAMPS = 128 << 20
MAXPOLL = 4096

S_W = 3
S_G, S_S, S_CB, S_KQ = 4, 5, 6, 7
S_T0, S_T1, S_T2, S_T3 = 8, 9, 10, 11
S_EX = 12
SRD_X, SRD_WQ, SRD_GU, SRD_WO, SRD_WD, SRD_WS, SRD_OUT = 40, 44, 48, 52, 56, 60, 64
SRD_K, SRD_V = 44, 48
S_OFFQ2 = 68
S_OFF8 = 68
S_OFFR = 73
S_WAVE = 75
S_TAG = 76
S_M0, S_M1 = 78, 79
S_C = 80
S_TMPA, S_TMPB = 82, 83
V_T, V_LANE, V_RG, V_CH, V_T16 = 0, 1, 2, 3, 4

class Ctx:
    def __init__(self): self.n = 0; self.stmod = " sc1"; self.ldmod = " sc1"
    def lab(self, b): self.n += 1; return f"L_{b}_{self.n}"

class Vm:
    def __init__(self): self.ops = []
    def issue(self, *names): self.ops += list(names)
    def wait(self, name):
        i = max(k for k, n in enumerate(self.ops) if n == name)
        return f"s_waitcnt vmcnt({len(self.ops) - 1 - i})"

class Stamper:
    def __init__(self, on, pfx): self.on = on; self.n = 0; self.pfx = pfx
    def stamp(self, a):
        if not self.on: return
        if self.n == 0:
            for k in range(16): a.I(f"s_mov_b32 s{84+k}, 0")
        a.I(f"s_memrealtime s[100:101]\ns_waitcnt lgkmcnt(0)\ns_mov_b32 s{84 + self.n}, s100")
        self.n += 1
    def flush(self, a):
        if not self.on: return
        lab = f"L_stamp_flush_{self.pfx}"
        a.I(f"s_cmp_lg_u32 s{S_WAVE}, 0\ns_cbranch_scc1 {lab}")
        for k in range(self.n, 16): a.I(f"s_mov_b32 s{84+k}, 0")
        for k in range(16): a.I(f"v_mov_b32 v{16+k}, s{84+k}")
        a.I(f"""
        s_lshl_b32 s100, s2, 6
        s_add_u32 s100, s100, {STAMPS}
        v_mov_b32 v13, s100
        s_mov_b64 exec, 1
        """)
        for k in range(4): a.I(f"buffer_store_dwordx4 {vr(16+4*k,4)}, v13, {sr(SRD_WS)}, 0 offen offset:{16*k}")
        a.I("s_mov_b64 exec, -1")
        a.L(lab)

def masked(a, c, lt, body, name):
    lab = c.lab("skip_" + name)
    a.I(f"v_cmp_gt_u32 vcc, {lt}, v0\ns_and_saveexec_b64 s[{S_EX}:{S_EX+1}], vcc\ns_cbranch_execz {lab}")
    body()
    a.L(lab); a.I("s_mov_b64 exec, -1")

def masked_range(a, c, lo, hi, tmp, body, name):
    lab = c.lab("skip_" + name)
    a.I(f"v_subrev_u32 v{tmp}, {lo}, v0\nv_cmp_gt_u32 vcc, {hi-lo}, v{tmp}\ns_and_saveexec_b64 s[{S_EX}:{S_EX+1}], vcc\ns_cbranch_execz {lab}")
    body()
    a.L(lab); a.I("s_mov_b64 exec, -1")

def srd(a, dst, plo, off_s, nrec):
    if off_s is None: a.I(f"s_mov_b32 s{dst}, s{plo}\ns_mov_b32 s{dst+1}, s{plo+1}")
    else: a.I(f"s_add_u32 s{dst}, s{plo}, s{off_s}\ns_addc_u32 s{dst+1}, s{plo+1}, 0")
    a.I(f"s_mov_b32 s{dst+2}, {nrec}\ns_mov_b32 s{dst+3}, 0x00020000")

def store_granule(a, c, g4, voff, soff):
    a.I(f"v_mov_b32 v{g4+2}, s{S_TAG}\nv_mov_b32 v{g4+3}, s{S_TAG+1}")
    a.I(f"buffer_store_dwordx4 {vr(g4,4)}, v{voff}, {sr(SRD_WS)}, {soff} offen{c.stmod}")

def tagcheck(a, acc, gbases):
    first = True
    for g in gbases:
        for k, st in ((2, S_TAG), (3, S_TAG + 1)):
            if first: a.I(f"v_xor_b32 v{acc}, s{st}, v{g+k}"); first = False
            else: a.I(f"v_xor_b32 v5, s{st}, v{g+k}\nv_or_b32 v{acc}, v{acc}, v5")

def poll(a, c, issue_loads, gbases, acc, name):
    top = c.lab("poll_" + name); done = c.lab("poll_done_" + name)
    a.I(f"s_mov_b32 s{S_T3}, 0")
    a.L(top)
    issue_loads()
    a.I(f"s_add_u32 s{S_T3}, s{S_T3}, 1\ns_waitcnt vmcnt(0)")
    tagcheck(a, acc, gbases)
    a.I(f"v_cmp_ne_u32 vcc, 0, v{acc}\ns_cbranch_vccz {done}\ns_cmp_lt_u32 s{S_T3}, {MAXPOLL}\ns_cbranch_scc1 {top}")
    a.L(done)

def load_tag(a, c):
    a.I(f"v_mov_b32 v12, {EPOCH}\nbuffer_load_dwordx2 v[10:11], v12, {sr(SRD_WS)}, 0 offen{c.ldmod}")
def finish_tag(a):
    a.I(f"""
    v_readfirstlane_b32 s{S_TAG}, v10
    v_readfirstlane_b32 s{S_TAG+1}, v11
    s_add_u32 s{S_TAG}, s{S_TAG}, 1
    s_addc_u32 s{S_TAG+1}, s{S_TAG+1}, 0
    """)

BULK = " nt"
D_S, D_S2, D_KV = 1, 2, 2
D_GU, D_WQ, D_WO, D_WD = 16, 36, 36, 44
WK = 56

def s_prologue(a, c):
    a.I(f"""
    s_lshr_b32 s{S_G}, s{S_W}, 4
    s_and_b32 s{S_S}, s{S_W}, 15
    s_lshr_b32 s{S_CB}, s{S_S}, 2
    s_and_b32 s{S_KQ}, s{S_S}, 3
    v_mul_u32_u24 v{V_RG}, 3641, v0
    v_lshrrev_b32 v{V_RG}, 18, v{V_RG}
    v_mul_u32_u24 v{V_CH}, 72, v{V_RG}
    v_sub_u32 v{V_CH}, v0, v{V_CH}
    s_mov_b32 s{S_OFFQ2}, {72*8192}
    """)
    for i in range(1, 5): a.I(f"s_mov_b32 s{S_OFF8+i}, {8*i*9216}")
    a.I(f"s_mov_b32 s{S_OFFR}, 9216\ns_mov_b32 s{S_OFFR+1}, 18432")
    srd(a, SRD_X, 16, None, 1152)
    a.I(f"""
    s_mul_i32 s{S_T0}, s{S_KQ}, 1179648
    s_lshl_b32 s{S_T1}, s{S_G}, 9
    s_add_u32 s{S_T0}, s{S_T0}, s{S_T1}
    s_lshl_b32 s{S_T1}, s{S_CB}, 7
    s_add_u32 s{S_T0}, s{S_T0}, s{S_T1}
    s_sub_u32 s{S_T2}, 4718592, s{S_T0}
    """)
    srd(a, SRD_WQ, 22, S_T0, f"s{S_T2}")
    a.I(f"""
    s_cmp_lt_u32 s{S_G}, 8
    s_cselect_b32 s{S_TMPA}, s28, s30
    s_cselect_b32 s{S_TMPB}, s29, s31
    s_mul_i32 s{S_T0}, s{S_S}, 331776
    s_and_b32 s{S_T1}, s{S_G}, 7
    s_mul_i32 s{S_T1}, s{S_T1}, 1152
    s_add_u32 s{S_T0}, s{S_T0}, s{S_T1}
    """)
    srd(a, SRD_GU, S_TMPA, S_T0, 36 * 9216)
    a.I(f"s_mul_i32 s{S_T0}, s{S_W}, 18432"); srd(a, SRD_WO, 24, S_T0, 18432)
    a.I(f"s_mul_i32 s{S_T0}, s{S_W}, 20736"); srd(a, SRD_WD, 32, S_T0, 20736)
    srd(a, SRD_OUT, 34, None, 1152)

def s_issue_x(a): a.I(f"v_lshlrev_b32 v5, 1, v0\nbuffer_load_ushort v15, v5, {sr(SRD_X)}, 0 offen")
def s_issue_wq(a):
    a.I(f"""
    v_lshrrev_b32 v5, 3, v0
    v_and_b32 v6, 7, v0
    v_lshlrev_b32 v5, 13, v5
    v_lshl_add_u32 v5, v6, 4, v5
    buffer_load_dwordx4 {vr(D_WQ,4)}, v5, {sr(SRD_WQ)}, 0 offen{BULK}
    buffer_load_dwordx4 {vr(D_WQ+4,4)}, v5, {sr(SRD_WQ)}, s{S_OFFQ2} offen{BULK}
    """)
def s_gu_addr(a): a.I(f"v_mul_u32_u24 v9, 9216, v{V_RG}\nv_lshl_add_u32 v9, v{V_CH}, 4, v9")
def s_issue_gu1(a, i):
    a.I(f"buffer_load_dwordx4 {vr(D_GU+4*i,4)}, v9, {sr(SRD_GU)}, " + ("0" if i == 0 else f"s{S_OFF8+i}") + f" offen{BULK}")
def s_issue_wo(a):
    a.I(f"buffer_load_dwordx4 {vr(D_WO,4)}, v{V_T16}, {sr(SRD_WO)}, 0 offen{BULK}")
    a.I(f"buffer_load_dwordx4 {vr(D_WO+4,4)}, v{V_T16}, {sr(SRD_WO)}, s{S_OFFR} offen{BULK}")
def s_issue_wd(a):
    a.I(f"buffer_load_dwordx4 {vr(D_WD,4)}, v{V_T16}, {sr(SRD_WD)}, 0 offen{BULK}")
    a.I(f"buffer_load_dwordx4 {vr(D_WD+4,4)}, v{V_T16}, {sr(SRD_WD)}, s{S_OFFR} offen{BULK}")
    a.I(f"buffer_load_dwordx4 {vr(D_WD+8,4)}, v{V_T16}, {sr(SRD_WD)}, s{S_OFFR+1} offen{BULK}")

def s_ln(a, c, wait_x):
    XF, A_, B_, Z = WK, WK+1, WK+2, WK+3
    R0 = WK + 4
    MEAN, VAR, D_ = WK+16, WK+17, WK+18
    a.C("layernorm (bf16 rounding points as in the reference)")
    a.I(wait_x)
    a.I(f"v_lshlrev_b32 v{XF}, 16, v15\nv_mov_b32 v{Z}, 0\nv_mov_b32 v{A_}, v{XF}")
    def wg_sum(red, dst):
        wave_reduce_to63(a, A_)
        a.I(f"""
        v_readlane_b32 s{S_T0}, v{A_}, 63
        s_lshl_b32 s{S_T1}, s{S_WAVE}, 2
        v_mov_b32 v{B_}, s{S_T0}
        v_mov_b32 v{A_}, s{S_T1}
        ds_write_b32 v{A_}, v{B_} offset:{red}
        """)
        barrier(a)
        a.I(f"""
        ds_read_b128 {vr(R0,4)}, v{Z} offset:{red}
        ds_read_b128 {vr(R0+4,4)}, v{Z} offset:{red+16}
        ds_read_b32 v{R0+8}, v{Z} offset:{red+32}
        s_waitcnt lgkmcnt(0)
        """)
        sum_chain(a, dst, list(range(R0, R0 + 9)))
        a.I(f"v_mul_f32 v{dst}, {f32bits(1.0/576.0):#x}, v{dst}")
    a.I(f"v_lshlrev_b32 v{B_}, 2, v{V_LANE}\nds_write_b32 v{B_}, v{Z} offset:{XNBUF + 576*4}")
    wg_sum(LN_RED1, MEAN)
    a.I(f"v_sub_f32 v{D_}, v{XF}, v{MEAN}\nv_mul_f32 v{A_}, v{D_}, v{D_}")
    wg_sum(LN_RED2, VAR)
    MB, T1, DEN, XC, RC, Q0, E_ = R0, R0+1, R0+2, R0+3, R0+4, R0+5, R0+6
    round_bf16(a, MB, MEAN); round_bf16(a, T1, VAR)
    a.I(f"v_add_f32 v{T1}, {f32bits(1e-5):#x}, v{T1}"); round_bf16(a, T1, T1)
    a.I(f"v_sqrt_f32 v{DEN}, v{T1}"); round_bf16(a, DEN, DEN)
    a.I(f"v_sub_f32 v{XC}, v{XF}, v{MB}"); round_bf16(a, XC, XC)
    a.I(f"""
    v_rcp_f32 v{RC}, v{DEN}
    v_mul_f32 v{Q0}, v{XC}, v{RC}
    v_fma_f32 v{E_}, -v{Q0}, v{DEN}, v{XC}
    v_fma_f32 v{Q0}, v{E_}, v{RC}, v{Q0}
    """)
    to_bf16_lo(a, Q0, Q0)
    a.I(f"v_lshlrev_b32 v{E_}, 2, v0\nds_write_b32 v{E_}, v{Q0} offset:{XNBUF}")
    barrier(a)

def s_qslab(a, waits):
    CL0, CL1, CH0, CH1, AD = WK, WK+1, WK+2, WK+3, WK+4
    ACC = WK + 8
    a.C("q slab: 144 rows x 64 cols")
    a.I(f"""
    v_lshrrev_b32 v{AD}, 3, v0
    v_lshlrev_b32 v{AD}, 2, v{AD}
    s_mul_i32 s{S_T0}, s{S_KQ}, 576
    v_add_u32 v{AD}, s{S_T0}, v{AD}
    ds_read_b32 v{CL0}, v{AD} offset:{XNBUF}
    ds_read_b32 v{CL1}, v{AD} offset:{XNBUF+288}
    s_waitcnt lgkmcnt(0)
    v_lshlrev_b32 v{CH0}, 16, v{CL0}
    v_lshlrev_b32 v{CH1}, 16, v{CL1}
    """)
    a.I(waits[0]); dot_slab(a, D_WQ, CL0, CH0, ACC, True)
    a.I(waits[1]); dot_slab(a, D_WQ + 4, CL1, CH1, ACC, False)
    reduce8_inwave(a, ACC)
    a.I(f"""
    v_lshrrev_b32 v{CL0}, 4, v{V_LANE}
    v_and_b32 v{CL1}, 1, v{CL0}
    v_lshlrev_b32 v{CL1}, 3, v{CL1}
    v_lshrrev_b32 v{CL0}, 1, v{CL0}
    v_lshl_add_u32 v{CL1}, v{CL0}, 2, v{CL1}
    v_and_b32 v{CL0}, 7, v{V_LANE}
    v_lshl_add_u32 v{CL1}, v{CL0}, 5, v{CL1}
    s_lshl_b32 s{S_T0}, s{S_WAVE}, 8
    v_add_u32 v{CL1}, s{S_T0}, v{CL1}
    ds_write_b32 v{CL1}, v{ACC} offset:{QPART}
    ds_write_b32 v{CL1}, v{ACC+4} offset:{QPART+16}
    """)

def s_publish_q(a, c):
    G = WK; R = WK + 4
    def body():
        a.I("v_lshlrev_b32 v5, 3, v0")
        for wv in range(9): a.I(f"ds_read_b64 {vr(R+2*wv,2)}, v5 offset:{QPART+256*wv}")
        a.I("s_waitcnt lgkmcnt(0)")
        sum_chain(a, G, [R + 2 * wv for wv in range(9)])
        sum_chain(a, G + 1, [R + 2 * wv + 1 for wv in range(9)])
        a.I(f"s_lshl_b32 s{S_T0}, s{S_W}, 9\ns_add_u32 s{S_T0}, s{S_T0}, {R1}")
        store_granule(a, c, G, V_T16, f"s{S_T0}")
    masked(a, c, 32, body, "pubq")

def s_guslab(a, vm, D):
    CL, CH, AD = WK, WK + 5, WK + 10
    ACC = WK + 16
    a.C("gate/up slab: 36 rows x 576 cols")
    s_gu_addr(a)
    for i in range(D): s_issue_gu1(a, i); vm.issue(f"GU{i}")
    a.I(f"s_mul_i32 s{S_T0}, s{S_S}, 144\nv_lshlrev_b32 v{AD}, 2, v{V_RG}\nv_add_u32 v{AD}, s{S_T0}, v{AD}")
    for i in range(5): a.I(f"ds_read_b32 v{CL+i}, v{AD} offset:{XNBUF+32*i}")
    a.I("s_waitcnt lgkmcnt(0)")
    for i in range(5): a.I(f"v_lshlrev_b32 v{CH+i}, 16, v{CL+i}")
    for i in range(5):
        a.I(vm.wait(f"GU{i}"))
        if i + D < 5: s_issue_gu1(a, i + D); vm.issue(f"GU{i+D}")
        dot_slab(a, D_GU + 4 * i, CL + i, CH + i, ACC, i == 0)
    a.I(f"""
    v_mul_u32_u24 v{AD}, 2304, v{V_RG}
    v_lshl_add_u32 v{AD}, v{V_CH}, 5, v{AD}
    ds_write_b128 v{AD}, {vr(ACC,4)} offset:{GUPART}
    ds_write_b128 v{AD}, {vr(ACC+4,4)} offset:{GUPART+16}
    """)

def s_publish_gu(a, c):
    G = WK; R = WK + 4; TP = 6
    def body():
        a.I(f"v_lshlrev_b32 v5, 3, v{TP}")
        for rg in range(8): a.I(f"ds_read_b64 {vr(R+2*rg,2)}, v5 offset:{GUPART+2304*rg}")
        a.I("s_waitcnt lgkmcnt(0)")
        sum_chain(a, G, [R + 2 * rg for rg in range(8)])
        sum_chain(a, G + 1, [R + 2 * rg + 1 for rg in range(8)])
        a.I(f"s_mul_i32 s{S_T0}, s{S_W}, 4608\ns_add_u32 s{S_T0}, s{S_T0}, {R2}\nv_lshlrev_b32 v5, 4, v{TP}")
        store_granule(a, c, G, 5, f"s{S_T0}")
    masked_range(a, c, 64, 352, TP, body, "pubgu")

def s_gather_c(a, c):
    G = WK; ACC = WK + 4
    def body_o():
        a.I(f"""
        s_lshl_b32 s{S_T0}, s{S_G}, 15
        s_lshl_b32 s{S_T1}, s{S_S}, 11
        s_add_u32 s{S_T0}, s{S_T0}, s{S_T1}
        s_add_u32 s{S_T0}, s{S_T0}, {R3}
        """)
        poll(a, c, lambda: a.I(f"buffer_load_dwordx4 {vr(G,4)}, v{V_T16}, {sr(SRD_WS)}, s{S_T0} offen{c.ldmod}"), [G], ACC, "o")
        a.I(f"v_lshlrev_b32 v5, 3, v0\nds_write_b64 v5, {vr(G,2)} offset:{OG}")
    masked(a, c, 128, body_o, "go")
    def body_s():
        a.I(f"""
        s_lshl_b32 s{S_T0}, s{S_G}, 9
        s_lshr_b32 s{S_T1}, s{S_S}, 3
        s_lshl_b32 s{S_T1}, s{S_T1}, 4
        s_add_u32 s{S_T0}, s{S_T0}, s{S_T1}
        s_add_u32 s{S_T0}, s{S_T0}, {R3S}
        v_lshlrev_b32 v7, 5, v6
        """)
        poll(a, c, lambda: a.I(f"buffer_load_dwordx4 {vr(G,4)}, v7, {sr(SRD_WS)}, s{S_T0} offen{c.ldmod}"), [G], ACC, "s")
        a.I(f"v_lshlrev_b32 v5, 3, v6\nds_write_b64 v5, {vr(G,2)} offset:{ST}")
    masked_range(a, c, 128, 144, 6, body_s, "gs")
    def body_g():
        a.I(f"""
        v_mul_u32_u24 v7, 7282, v6
        v_lshrrev_b32 v7, 16, v7
        v_mul_u32_u24 v8, 9, v7
        v_sub_u32 v8, v6, v8
        v_lshrrev_b32 v9, 4, v7
        v_and_b32 v10, 15, v7
        v_lshlrev_b32 v9, 7, v9
        v_add_u32 v9, v9, v10
        v_mul_u32_u24 v9, 288, v9
        v_add_u32 v9, v9, v8
        v_lshlrev_b32 v9, 4, v9
        s_lshr_b32 s{S_T0}, s{S_W}, 5
        s_mul_i32 s{S_T0}, s{S_T0}, {16*288*16}
        s_and_b32 s{S_T1}, s{S_W}, 31
        s_mul_i32 s{S_T1}, s{S_T1}, 144
        s_add_u32 s{S_T0}, s{S_T0}, s{S_T1}
        s_add_u32 s{S_T0}, s{S_T0}, {R2}
        """)
        poll(a, c, lambda: a.I(f"buffer_load_dwordx4 {vr(G,4)}, v9, {sr(SRD_WS)}, s{S_T0} offen{c.ldmod}"), [G], ACC, "g")
        a.I(f"v_lshlrev_b32 v5, 3, v6\nds_write_b64 v5, {vr(G,2)} offset:{GG}")
    masked_range(a, c, 192, 480, 6, body_g, "gg")

def s_combine(a, c):
    lab0 = c.lab("skip_oc")
    S2, F, LS, O4, M, T = WK, WK+2, WK+3, WK+4, WK+8, WK+9
    a.I(f"s_cmp_lg_u32 s{S_WAVE}, 0\ns_cbranch_scc1 {lab0}")
    a.I(f"""
    v_and_b32 v5, 15, v{V_LANE}
    v_lshlrev_b32 v6, 3, v5
    ds_read_b64 {vr(S2,2)}, v6 offset:{ST}
    v_lshlrev_b32 v6, 6, v5
    v_lshrrev_b32 v7, 4, v{V_LANE}
    v_lshl_add_u32 v6, v7, 4, v6
    ds_read_b128 {vr(O4,4)}, v6 offset:{OG}
    s_waitcnt lgkmcnt(0)
    v_mov_b32 v{M}, v{S2}
    """)
    row_allreduce(a, [M], "v_max_f32")
    a.I(f"v_sub_f32 v{F}, v{S2}, v{M}\nv_exp_f32 v{F}, v{F}\nv_mul_f32 v{LS}, v{F}, v{S2+1}")
    for k in range(4): a.I(f"v_mul_f32 v{O4+k}, v{O4+k}, v{F}")
    row_allreduce(a, [LS, O4, O4 + 1, O4 + 2, O4 + 3])
    a.I(f"v_rcp_f32 v{T}, v{LS}")
    for k in range(4): a.I(f"v_mul_f32 v{O4+k}, v{O4+k}, v{T}")
    for k in range(4): to_bf16_lo(a, O4 + k, O4 + k)
    a.I(f"""
    v_lshlrev_b32 v6, 4, v7
    ds_write_b128 v6, {vr(O4,4)} offset:{COEFO}
    v_mov_b32 v{T}, 0
    v_and_b32 v6, 7, v5
    v_lshlrev_b32 v6, 2, v6
    ds_write_b32 v6, v{T} offset:{COEFH+72}
    """)
    a.L(lab0)
    Gv, Uv, T2, E = WK, WK+1, WK+2, WK+3
    def body():
        a.I(f"""
        v_lshrrev_b32 v7, 4, v6
        v_and_b32 v8, 15, v6
        v_mul_u32_u24 v8, 72, v8
        v_lshl_add_u32 v8, v7, 2, v8
        ds_read_b32 v{Gv}, v8 offset:{GG}
        ds_read_b32 v{Uv}, v8 offset:{GG+1152}
        s_waitcnt lgkmcnt(0)
        """)
        row_allreduce(a, [Gv, Uv])
        round_bf16(a, Gv, Gv); round_bf16(a, Uv, Uv)
        a.I(f"""
        v_mul_f32 v{E}, {f32bits(-LOG2E):#x}, v{Gv}
        v_exp_f32 v{E}, v{E}
        v_add_f32 v{E}, 1.0, v{E}
        v_rcp_f32 v{E}, v{E}
        v_mul_f32 v{T2}, v{Gv}, v{E}
        """)
        round_bf16(a, T2, T2)
        a.I(f"v_mul_f32 v{T2}, v{T2}, v{Uv}")
        to_bf16_lo(a, T2, T2)
        a.I(f"v_lshlrev_b32 v8, 2, v7\nds_write_b32 v8, v{T2} offset:{COEFH}")
    masked_range(a, c, 64, 352, 6, body, "hc")

def s_slabs_c(a, waitsO, waitsD):
    CO, CD, HO, HD, AD = WK, WK+2, WK+5, WK+7, WK+10
    AS, AY = 16, 24
    a.I(f"v_lshlrev_b32 v{AD}, 2, v{V_RG}")
    for i in range(2): a.I(f"ds_read_b32 v{CO+i}, v{AD} offset:{COEFO+32*i}")
    for i in range(3): a.I(f"ds_read_b32 v{CD+i}, v{AD} offset:{COEFH+32*i}")
    a.I("s_waitcnt lgkmcnt(0)")
    for i in range(2): a.I(f"v_lshlrev_b32 v{HO+i}, 16, v{CO+i}")
    for i in range(3): a.I(f"v_lshlrev_b32 v{HD+i}, 16, v{CD+i}")
    for i in range(2):
        a.I(waitsO[i]); dot_slab(a, D_WO + 4 * i, CO + i, HO + i, AS, i == 0)
    for i in range(3):
        a.I(waitsD[i]); dot_slab(a, D_WD + 4 * i, CD + i, HD + i, AY, i == 0)
    a.I(f"""
    v_mul_u32_u24 v{AD}, 2304, v{V_RG}
    v_lshl_add_u32 v{AD}, v{V_CH}, 5, v{AD}
    ds_write_b128 v{AD}, {vr(AS,4)} offset:{PS}
    ds_write_b128 v{AD}, {vr(AS+4,4)} offset:{PS+16}
    ds_write_b128 v{AD}, {vr(AY,4)} offset:{PY}
    ds_write_b128 v{AD}, {vr(AY+4,4)} offset:{PY+16}
    """)

def s_publish_c(a, c):
    G = WK; R = WK + 4
    a.I(f"v_lshlrev_b32 v5, 2, v0\nv_add_u32 v6, {PY}, v5")
    for rg in range(8): a.I(f"ds_read_b32 v{R+rg}, v5 offset:{PS+2304*rg}")
    for rg in range(8): a.I(f"ds_read_b32 v{R+8+rg}, v6 offset:{2304*rg}")
    a.I("s_waitcnt lgkmcnt(0)")
    sum_chain(a, G, [R + rg for rg in range(8)])
    sum_chain(a, G + 1, [R + 8 + rg for rg in range(8)])
    a.I(f"""
    v_mul_u32_u24 v5, 7282, v0
    v_lshrrev_b32 v5, 16, v5
    v_mul_u32_u24 v6, 9, v5
    v_sub_u32 v6, v0, v6
    v_mul_u32_u24 v5, 36864, v5
    v_lshl_add_u32 v5, v6, 4, v5
    s_mul_i32 s{S_T0}, s{S_W}, 144
    s_add_u32 s{S_T0}, s{S_T0}, {R4}
    """)
    store_granule(a, c, G, 5, f"s{S_T0}")

def s_final(a, c, st):
    lab = c.lab("skip_final")
    G = WK; ACC = WK + 16
    a.I(f"s_cmp_ge_u32 s{S_W}, 64\ns_cbranch_scc1 {lab}")
    a.I(f"""
    s_mul_i32 s{S_T0}, s{S_W}, 36864
    s_add_u32 s{S_T0}, s{S_T0}, {R4}
    s_add_u32 s{S_T1}, s{S_T0}, 9216
    s_add_u32 s{S_T2}, s{S_T0}, 18432
    s_add_u32 s{S_TMPA}, s{S_T0}, 27648
    s_mul_i32 s{S_TMPB}, s{S_W}, 9
    s_add_u32 s{S_TMPB}, s{S_TMPB}, s{S_WAVE}
    s_lshl_b32 s{S_TMPB}, s{S_TMPB}, 1
    v_mov_b32 v7, s{S_TMPB}
    buffer_load_ushort v15, v7, {sr(SRD_X)}, 0 offen
    """)
    offs = [S_T0, S_T1, S_T2, S_TMPA]
    def loads():
        for k in range(4): a.I(f"buffer_load_dwordx4 {vr(G+4*k,4)}, v{V_T16}, {sr(SRD_WS)}, s{offs[k]} offen{c.ldmod}")
    poll(a, c, loads, [G, G + 4, G + 8, G + 12], ACC, "f")
    a.I(f"v_lshlrev_b32 v5, 3, v0\nv_add_u32 v5, {FB}, v5")
    for k in range(4): a.I(f"ds_write_b64 v5, {vr(G+4*k,2)} offset:{4608*k}")
    barrier(a)
    st.stamp(a)
    a.I(f"""
    v_mul_u32_u24 v5, 72, v{V_LANE}
    s_lshl_b32 s{S_T1}, s{S_WAVE}, 3
    s_add_u32 s{S_T1}, s{S_T1}, {FB}
    v_add_u32 v5, s{S_T1}, v5
    """)
    for k in range(4): a.I(f"ds_read_b64 {vr(G+2*k,2)}, v5 offset:{4608*k}")
    a.I("s_waitcnt lgkmcnt(0)")
    SS, YY, T, E = WK+16, WK+17, WK+18, WK+19
    sum_chain(a, SS, [G, G + 2, G + 4, G + 6]); sum_chain(a, YY, [G + 1, G + 3, G + 5, G + 7])
    for sh in (1, 2, 4, 8):
        a.I(f"v_add_f32 v{SS}, v{SS}, v{SS} row_shr:{sh}\nv_add_f32 v{YY}, v{YY}, v{YY} row_shr:{sh}")
    for r in (SS, YY): a.I(f"v_add_f32 v{r}, v{r}, v{r} row_bcast:15 row_mask:0xa")
    for r in (SS, YY): a.I(f"v_add_f32 v{r}, v{r}, v{r} row_bcast:31 row_mask:0xc")
    round_bf16(a, SS, SS); round_bf16(a, YY, YY)
    a.I(f"""
    v_mul_f32 v{E}, {f32bits(-LOG2E):#x}, v{YY}
    v_exp_f32 v{E}, v{E}
    v_add_f32 v{E}, 1.0, v{E}
    v_rcp_f32 v{E}, v{E}
    v_mul_f32 v{T}, v{YY}, v{E}
    """)
    round_bf16(a, T, T)
    a.I(f"v_mul_f32 v{T}, v{SS}, v{T}")
    round_bf16(a, T, T)
    a.I(f"v_lshlrev_b32 v{E}, 16, v15\nv_add_f32 v{T}, v{E}, v{T}")
    to_bf16_lo(a, T, T)
    a.I(f"""
    s_mov_b32 exec_lo, 0
    s_mov_b32 exec_hi, 0x80000000
    buffer_store_short v{T}, v7, {sr(SRD_OUT)}, 0 offen
    s_mov_b64 exec, -1
    """)
    lab2 = c.lab("skip_epoch")
    a.I(f"""
    s_or_b32 s{S_T1}, s{S_W}, s{S_WAVE}
    s_cmp_lg_u32 s{S_T1}, 0
    s_cbranch_scc1 {lab2}
    v_mov_b32 v8, s{S_TAG}
    v_mov_b32 v9, s{S_TAG+1}
    v_mov_b32 v10, {EPOCH}
    s_mov_b64 exec, 1
    buffer_store_dwordx2 v[8:9], v10, {sr(SRD_WS)}, 0 offen sc1
    s_mov_b64 exec, -1
    """)
    a.L(lab2)
    a.L(lab)

def role_s(a, c, st):
    vm = Vm()
    s_prologue(a, c)
    a.I("s_setprio 3")
    st.stamp(a)
    load_tag(a, c); vm.issue("E")
    s_issue_x(a); vm.issue("X")
    s_issue_wq(a); vm.issue("WQ0", "WQ1")
    a.I(vm.wait("E")); finish_tag(a)
    s_ln(a, c, vm.wait("X"))
    st.stamp(a)
    s_qslab(a, [vm.wait("WQ0"), vm.wait("WQ1")])
    barrier(a)
    s_publish_q(a, c)
    st.stamp(a)
    a.I("s_setprio 0")
    s_guslab(a, vm, D_S)
    barrier(a)
    s_publish_gu(a, c)
    st.stamp(a)
    lds = [("WO0", D_WO, SRD_WO, "0"), ("WO1", D_WO + 4, SRD_WO, f"s{S_OFFR}"), ("WD0", D_WD, SRD_WD, "0"), ("WD1", D_WD + 4, SRD_WD, f"s{S_OFFR}"), ("WD2", D_WD + 8, SRD_WD, f"s{S_OFFR+1}")]
    for k, (nm, d, sd, so) in enumerate(lds):
        if k >= D_S2: a.I(f"s_waitcnt vmcnt({D_S2-1})")
        a.I(f"buffer_load_dwordx4 {vr(d,4)}, v{V_T16}, {sr(sd)}, {so} offen{BULK}"); vm.issue(nm)
    a.I("s_setprio 3")
    s_gather_c(a, c)
    barrier(a)
    st.stamp(a)
    s_combine(a, c)
    barrier(a)
    s_slabs_c(a, [vm.wait("WO0"), vm.wait("WO1")], [vm.wait("WD0"), vm.wait("WD1"), vm.wait("WD2")])
    barrier(a)
    s_publish_c(a, c)
    st.stamp(a)
    s_final(a, c, st)
    st.stamp(a)
    st.flush(a)

D_K, D_V = 16, 32
KW = 48

def kv_prologue(a, c):
    a.I(f"""
    s_lshr_b32 s{S_G}, s{S_W}, 4
    s_and_b32 s{S_S}, s{S_W}, 15
    s_mov_b32 s{S_C}, {f32bits(SCALE_LOG2E):#x}
    s_lshl_b32 s{S_T0}, s{S_G}, 21
    s_lshl_b32 s{S_T1}, s{S_S}, 15
    s_add_u32 s{S_T0}, s{S_T0}, s{S_T1}
    s_add_u32 s{S_T0}, s{S_T0}, 1572864
    """)
    srd(a, SRD_K, 18, S_T0, 32768)
    srd(a, SRD_V, 20, S_T0, 32768)

def kv_issue_paced(a, D):
    a.I(f"v_lshrrev_b32 v5, 6, v0\nv_lshlrev_b32 v5, 12, v5\nv_lshl_add_u32 v5, v{V_LANE}, 4, v5")
    k = 0
    for base, sd in ((D_K, SRD_K), (D_V, SRD_V)):
        for i in range(4):
            if k >= D: a.I(f"s_waitcnt vmcnt({D-1})")
            a.I(f"buffer_load_dwordx4 {vr(base+4*i,4)}, v5, {sr(sd)}, 0 offen" + (f" offset:{1024*i}" if i else "") + BULK)
            k += 1

def kv_gather_q(a, c):
    G = KW
    ACC = 15
    lab = c.lab("skip_gq")
    a.I(f"s_cmp_lg_u32 s{S_WAVE}, 8\ns_cbranch_scc1 {lab}")
    a.I(f"""
    v_lshrrev_b32 v6, 5, v{V_LANE}
    v_lshlrev_b32 v6, 11, v6
    v_and_b32 v7, 31, v{V_LANE}
    v_lshl_add_u32 v6, v7, 4, v6
    s_lshl_b32 s{S_T0}, s{S_G}, 13
    s_add_u32 s{S_T0}, s{S_T0}, {R1}
    s_add_u32 s{S_T1}, s{S_T0}, 4096
    """)
    def loads():
        for u, so in ((0, S_T0), (1, S_T1)):
            for k in range(4):
                a.I(f"buffer_load_dwordx4 {vr(G+16*u+4*k,4)}, v6, {sr(SRD_WS)}, s{so} offen" + (f" offset:{512*k}" if k else "") + c.ldmod)
    poll(a, c, loads, [G + 4 * k for k in range(8)], ACC, "q")
    for u in range(2):
        b = G + 16 * u
        sum_chain(a, b, [b, b + 4, b + 8, b + 12]); sum_chain(a, b + 1, [b + 1, b + 5, b + 9, b + 13])
        a.I(f"v_cvt_pk_bf16_f32 v{b}, v{b}, v{b+1}")
    a.I(f"v_lshlrev_b32 v5, 2, v{V_LANE}\nds_write_b32 v5, v{G} offset:{QBUF}\nds_write_b32 v5, v{G+16} offset:{QBUF+256}")
    a.L(lab)

def kv_attn(a, c, waitK, waitV):
    lab = c.lab("skip_attn")
    Q0, Q1 = KW, KW + 4
    SC = KW + 8
    P_LO, P_HI = D_K, D_K + 8
    ACC = KW
    MX0, MX1, CC, MC0, MC1, L0, L1 = 64, 65, 66, 67, 68, 69, 70
    ST4 = 72
    a.C("attention: scores / softmax / PV for 16 keys per wave")
    a.I(f"s_cmp_ge_u32 s{S_WAVE}, 8\ns_cbranch_scc1 {lab}")
    a.I(f"""
    v_and_b32 v5, 15, v{V_LANE}
    v_lshlrev_b32 v5, 4, v5
    ds_read_b128 {vr(Q0,4)}, v5 offset:{QBUF}
    ds_read_b128 {vr(Q1,4)}, v5 offset:{QBUF+256}
    v_mov_b32 v{CC}, s{S_C}
    s_waitcnt lgkmcnt(0)
    """)
    a.I(waitK)
    for j in range(4):
        for i in range(4):
            for h, q in ((0, Q0), (1, Q1)):
                s2 = "0" if j == 0 else f"v{SC+h*4+i}"
                a.I(f"v_dot2_f32_bf16 v{SC+h*4+i}, v{D_K+4*i+j}, v{q+j}, {s2}")
    row_allreduce(a, [SC + k for k in range(8)])
    for h, mx in ((0, MX0), (1, MX1)):
        a.I(f"v_max3_f32 v{mx}, v{SC+4*h}, v{SC+4*h+1}, v{SC+4*h+2}")
        a.I(f"v_max_f32 v{mx}, v{mx}, v{SC+4*h+3}")
    for mx in (MX0, MX1): a.I(f"v_max_f32 v{mx}, v{mx}, v{mx} row_bcast:15 row_mask:0xa")
    for mx in (MX0, MX1): a.I(f"v_max_f32 v{mx}, v{mx}, v{mx} row_bcast:31 row_mask:0xc")
    a.I(f"v_readlane_b32 s{S_M0}, v{MX0}, 63\nv_readlane_b32 s{S_M1}, v{MX1}, 63")
    a.I(f"v_mul_f32 v{MC0}, s{S_M0}, v{CC}\nv_mul_f32 v{MC1}, s{S_M1}, v{CC}")
    for h, mc in ((0, MC0), (1, MC1)):
        for i in range(4): a.I(f"v_fma_f32 v{SC+4*h+i}, v{SC+4*h+i}, v{CC}, -v{mc}")
    for k in range(8): a.I(f"v_exp_f32 v{SC+k}, v{SC+k}")
    for k in range(8):
        a.I(f"v_cvt_pk_bf16_f32 v{P_LO+k}, v{SC+k}, 0\nv_cvt_pk_bf16_f32 v{P_HI+k}, 0, v{SC+k}")
    for h, l in ((0, L0), (1, L1)): sum_chain(a, l, [SC + 4 * h + i for i in range(4)])
    for l in (L0, L1): a.I(f"v_add_f32 v{l}, v{l}, v{l} row_bcast:15 row_mask:0xa")
    for l in (L0, L1): a.I(f"v_add_f32 v{l}, v{l}, v{l} row_bcast:31 row_mask:0xc")
    a.I(waitV)
    for i in range(4):
        for h in range(2):
            for j in range(4):
                A0 = ACC + 8 * h + 2 * j
                a.I(f"v_dot2_f32_bf16 v{A0}, v{D_V+4*i+j}, v{P_LO+4*h+i}, " + ("0" if i == 0 else f"v{A0}"))
                a.I(f"v_dot2_f32_bf16 v{A0+1}, v{D_V+4*i+j}, v{P_HI+4*h+i}, " + ("0" if i == 0 else f"v{A0+1}"))
    reduce16_inwave(a, ACC)
    a.I(f"s_lshl_b32 s{S_T0}, s{S_WAVE}, 10\nv_lshlrev_b32 v5, 2, v{V_LANE}\nv_add_u32 v5, s{S_T0}, v5")
    for m in range(4): a.I(f"ds_write_b32 v5, v{ACC+4*m} offset:{OBUF+256*m}")
    a.I(f"""
    v_mov_b32 v{ST4}, v{MC0}
    v_mov_b32 v{ST4+1}, v{L0}
    v_mov_b32 v{ST4+2}, v{MC1}
    v_mov_b32 v{ST4+3}, v{L1}
    s_lshl_b32 s{S_T0}, s{S_WAVE}, 4
    v_mov_b32 v5, s{S_T0}
    s_mov_b32 exec_lo, 0
    s_mov_b32 exec_hi, 0x80000000
    ds_write_b128 v5, {vr(ST4,4)} offset:{STATS}
    s_mov_b64 exec, -1
    """)
    a.L(lab)

def kv_merge_publish(a, c):
    SM = KW; F = KW + 16; OA, OB = D_K, D_K + 8
    G = 72; MC, LL = 76, 77; GS = KW
    def body():
        a.I("v_lshrrev_b32 v5, 6, v0\nv_lshlrev_b32 v5, 3, v5")
        for wv in range(8): a.I(f"ds_read_b64 {vr(SM+2*wv,2)}, v5 offset:{STATS+16*wv}")
        a.I(f"""
        v_lshrrev_b32 v6, 5, v0
        v_lshlrev_b32 v6, 8, v6
        v_bfe_u32 v7, v0, 4, 1
        v_lshl_add_u32 v6, v7, 6, v6
        v_and_b32 v7, 15, v0
        v_lshl_add_u32 v6, v7, 2, v6
        """)
        for wv in range(8):
            a.I(f"ds_read_b32 v{OA+wv}, v6 offset:{OBUF+1024*wv}\nds_read_b32 v{OB+wv}, v6 offset:{OBUF+1024*wv+128}")
        a.I("s_waitcnt lgkmcnt(0)")
        mcs = [SM + 2 * wv for wv in range(8)]; ls = [SM + 2 * wv + 1 for wv in range(8)]
        a.I(f"v_max3_f32 v{MC}, v{mcs[0]}, v{mcs[1]}, v{mcs[2]}")
        a.I(f"v_max3_f32 v{MC}, v{MC}, v{mcs[3]}, v{mcs[4]}")
        a.I(f"v_max3_f32 v{MC}, v{MC}, v{mcs[5]}, v{mcs[6]}")
        a.I(f"v_max_f32 v{MC}, v{MC}, v{mcs[7]}")
        for wv in range(8): a.I(f"v_sub_f32 v{F+wv}, v{mcs[wv]}, v{MC}")
        for wv in range(8): a.I(f"v_exp_f32 v{F+wv}, v{F+wv}")
        a.I(f"v_mul_f32 v{LL}, v{F}, v{ls[0]}\nv_mul_f32 v{G}, v{F}, v{OA}\nv_mul_f32 v{G+1}, v{F}, v{OB}")
        for wv in range(1, 8):
            a.I(f"v_fmac_f32 v{LL}, v{F+wv}, v{ls[wv]}\nv_fmac_f32 v{G}, v{F+wv}, v{OA+wv}\nv_fmac_f32 v{G+1}, v{F+wv}, v{OB+wv}")
        a.I(f"""
        v_lshrrev_b32 v5, 6, v0
        v_lshlrev_b32 v5, 3, v5
        v_bfe_u32 v6, v0, 1, 3
        v_add_u32 v5, v5, v6
        v_lshlrev_b32 v5, 11, v5
        v_and_b32 v6, 1, v0
        v_lshl_add_u32 v5, v6, 6, v5
        v_bfe_u32 v6, v0, 5, 1
        v_lshl_add_u32 v5, v6, 5, v5
        v_bfe_u32 v6, v0, 4, 1
        v_lshl_add_u32 v5, v6, 4, v5
        s_lshl_b32 s{S_T0}, s{S_G}, 15
        s_lshl_b32 s{S_T1}, s{S_S}, 7
        s_add_u32 s{S_T0}, s{S_T0}, s{S_T1}
        s_add_u32 s{S_T0}, s{S_T0}, {R3}
        """)
        store_granule(a, c, G, 5, f"s{S_T0}")
        lab = c.lab("skip_pst")
        a.I(f"""
        v_and_b32 v6, 63, v0
        v_cmp_eq_u32 vcc, 0, v6
        s_and_saveexec_b64 s[14:15], vcc
        s_cbranch_execz {lab}
        v_mov_b32 v{GS}, v{MC}
        v_mov_b32 v{GS+1}, v{LL}
        v_lshrrev_b32 v5, 6, v0
        v_lshlrev_b32 v5, 4, v5
        s_lshl_b32 s{S_T0}, s{S_W}, 5
        s_add_u32 s{S_T0}, s{S_T0}, {R3S}
        """)
        store_granule(a, c, GS, 5, f"s{S_T0}")
        a.L(lab)
    masked(a, c, 128, body, "mrg")

def role_kv(a, c, st):
    vm = Vm()
    kv_prologue(a, c)
    a.I("s_setprio 2")
    st.stamp(a)
    load_tag(a, c); vm.issue("E")
    a.I("s_waitcnt vmcnt(0)"); finish_tag(a)
    lab = c.lab("kv_noload")
    a.I(f"s_cmp_ge_u32 s{S_WAVE}, 8\ns_cbranch_scc1 {lab}")
    kv_issue_paced(a, D_KV)
    a.L(lab)
    vm.issue("K0", "K1", "K2", "K3", "V0", "V1", "V2", "V3")
    kv_gather_q(a, c)
    barrier(a)
    st.stamp(a)
    kv_attn(a, c, vm.wait("K3"), vm.wait("V3"))
    barrier(a)
    kv_merge_publish(a, c)
    st.stamp(a)
    st.flush(a)

def build(stamps=False):
    a = Asm(); c = Ctx()
    a.raw(f".globl {KN}\n.p2align 8\n.type {KN},@function\n{KN}:")
    a.I(f"""
    s_cmp_ge_u32 s2, 512
    s_cbranch_scc1 L_exit
    s_load_dwordx16 s[16:31], s[0:1], 0
    s_load_dwordx8 s[32:39], s[0:1], 64
    s_and_b32 s{S_W}, s2, 255
    v_and_b32 v{V_LANE}, 63, v0
    v_lshlrev_b32 v{V_T16}, 4, v0
    v_lshrrev_b32 v5, 6, v0
    v_readfirstlane_b32 s{S_WAVE}, v5
    s_waitcnt lgkmcnt(0)
    """)
    srd(a, SRD_WS, 38, None, WS_BYTES)
    a.I("s_cmp_ge_u32 s2, 256\ns_cbranch_scc1 L_role_kv")
    role_s(a, c, Stamper(stamps, "s"))
    a.I("s_branch L_exit")
    a.L("L_role_kv")
    role_kv(a, c, Stamper(stamps, "k"))
    a.L("L_exit")
    a.I("s_endpgm")
    out = HEADER + "\n; two roles in one kernel: ids 0..255 slab/FFN role, ids 256..511 attention role; 2 workgroups per CU, all co-resident\n"
    out += f"; @launch grid=(512,1,1) block=(576,1,1) lds={LDS_BYTES}\n"
    out += '.amdgcn_target "amdgcn-amd-amdhsa--gfx950"\n.text\n' + a.render()
    out += f""".section .rodata,"a"
.p2align 6
.amdhsa_kernel {KN}
  .amdhsa_next_free_vgpr 80
  .amdhsa_next_free_sgpr 102
  .amdhsa_accum_offset 80
  .amdhsa_group_segment_fixed_size 0
  .amdhsa_kernarg_size 96
  .amdhsa_user_sgpr_count 2
  .amdhsa_user_sgpr_kernarg_segment_ptr 1
  .amdhsa_system_sgpr_workgroup_id_x 1
.end_amdhsa_kernel
"""
    return out

if __name__ == "__main__":
    open("v3.s", "w").write(build(False))
    open("v3st.s", "w").write(build(True))
```

```python
import re

TRANS = ("v_exp_f32", "v_log_f32", "v_rcp_f32", "v_rsq_f32", "v_sqrt_f32", "v_sin_f32", "v_cos_f32")

def _regs(tok):
    tok = tok.strip()
    neg = tok.startswith("-")
    if neg: tok = tok[1:]
    m = re.fullmatch(r"([vs])(\d+)", tok)
    if m: return [m.group(1) + m.group(2)]
    m = re.fullmatch(r"([vs])\[(\d+):(\d+)\]", tok)
    if m: return [m.group(1) + str(i) for i in range(int(m.group(2)), int(m.group(3)) + 1)]
    if tok == "vcc": return ["vcc"]
    if tok in ("exec",): return ["exec"]
    return []

def _split_ops(s):
    ops, depth, cur = [], 0, ""
    for ch in s:
        if ch == "[": depth += 1
        if ch == "]": depth -= 1
        if ch == "," and depth == 0:
            ops.append(cur.strip()); cur = ""
        else:
            cur += ch
    if cur.strip(): ops.append(cur.strip())
    return ops

class Ins:
    __slots__ = ("text", "mn", "ops", "mods", "rd", "wr", "kind", "states")
    def __init__(self, text):
        self.text = text
        t = text.strip()
        mn, _, rest = t.partition(" ")
        self.mn = mn
        ops = _split_ops(rest)
        mods = ""
        if ops:
            last = ops[-1].split()
            if len(last) > 1:
                ops[-1] = last[0]; mods = " ".join(last[1:])
        self.ops, self.mods = ops, mods
        self.rd, self.wr = set(), set()
        self.kind = set()
        self.states = 1
        self.classify()

    def classify(self):
        mn, ops, mods = self.mn, self.ops, self.mods
        k = self.kind
        if mn == "s_nop":
            self.states = int(ops[0], 0) + 1; k.add("nop"); return
        if mn.startswith("s_"):
            k.add("salu"); return
        if mn.startswith("buffer_") or mn.startswith("global_") or mn.startswith("flat_"):
            k.add("vmem")
            is_store = "_store_" in mn
            is_atomic = "_atomic_" in mn
            regs = [_regs(o) for o in ops]
            if mn in ("buffer_inv", "buffer_wbl2"): return
            if is_store:
                for r in regs: self.rd.update(r)
                if mn.endswith("x4") or mn.endswith("x3"):
                    k.add("widestore")
            elif is_atomic:
                for r in regs: self.rd.update(r)
            else:
                self.wr.update(regs[0])
                for r in regs[1:]: self.rd.update(r)
            return
        if mn.startswith("ds_"):
            k.add("ds")
            regs = [_regs(o) for o in ops]
            if mn.startswith("ds_read") or mn.startswith("ds_bpermute") or mn.startswith("ds_permute") or mn.startswith("ds_swizzle"):
                self.wr.update(regs[0])
                for r in regs[1:]: self.rd.update(r)
            else:
                for r in regs: self.rd.update(r)
            return
        if mn.startswith("v_mfma"):
            k.add("mfma")
            regs = [_regs(o) for o in ops]
            self.wr.update(regs[0])
            for r in regs[1:]: self.rd.update(r)
            return
        if mn.startswith("v_"):
            k.add("valu")
            regs = [_regs(o) for o in ops]
            base = mn.replace("_e32", "").replace("_e64", "").replace("_dpp", "")
            if base in TRANS: k.add("trans")
            if base.startswith("v_dot2"): k.add("dot")
            if re.search(r"(row_|quad_perm|wave_)", mods): k.add("dpp")
            if base.startswith("v_permlane") and base.endswith("_swap_b32"):
                k.add("permswap")
                for r in regs: self.rd.update(r); self.wr.update(r)
                return
            if base in ("v_readlane_b32", "v_readfirstlane_b32"):
                k.add("readlane")
            if base == "v_writelane_b32": k.add("writelane")
            self.wr.update(regs[0])
            start = 1
            if base in ("v_add_co_u32", "v_sub_co_u32", "v_addc_co_u32", "v_subb_co_u32", "v_div_scale_f32", "v_mad_u64_u32"):
                self.wr.update(regs[1]); start = 2
            for r in regs[start:]: self.rd.update(r)
            if base in ("v_fmac_f32", "v_dot2c_f32_bf16", "v_writelane_b32") : self.rd.update(regs[0])
            if base.startswith("v_cndmask") and len(ops) == 3: self.rd.add("vcc")
            if base == "v_cndmask_b32" and len(ops) == 3: self.rd.add("vcc")
            if "dpp" in k: self.rd.update(regs[0])
            return
        raise ValueError("unknown instr: " + self.text)

class Asm:
    def __init__(self):
        self.lines = []
    def I(self, text):
        for t in text.strip().split("\n"):
            t = t.split(";")[0].strip()
            if t: self.lines.append(("i", Ins(t)))
    def C(self, text): self.lines.append(("c", text))
    def L(self, name): self.lines.append(("l", name))
    def raw(self, text): self.lines.append(("r", text))

    @staticmethod
    def need(prev, cur):
        n = 0
        pk, ck = prev.kind, cur.kind
        if "valu" in pk:
            vw = {r for r in prev.wr if r[0] == "v" and r != "vcc"}
            sw = {r for r in prev.wr if r[0] == "s" or r == "vcc"}
            if vw:
                if "dpp" in ck and vw & cur.rd: n = max(n, 2)
                if "readlane" in ck and vw & cur.rd: n = max(n, 1)
                if "permswap" in ck and vw & cur.rd: n = max(n, 2)
                if "trans" in pk and "valu" in ck and vw & cur.rd: n = max(n, 1)
                if "dot" in pk:
                    touched = vw & (cur.rd | cur.wr)
                    if touched:
                        if "dot" in ck and cur.mn == prev.mn:
                            ab = set(_regs(cur.ops[1])) | set(_regs(cur.ops[2]))
                            if vw & ab: n = max(n, 3)
                        else:
                            n = max(n, 3)
            if sw:
                if "valu" in ck and sw & cur.rd: n = max(n, 2)
                if ("readlane" in ck or "writelane" in ck) and len(cur.ops) == 3 and sw & set(_regs(cur.ops[2])): n = max(n, 4)
                if "vmem" in ck and sw & cur.rd: n = max(n, 5)
        if "mfma" in pk:
            D = set(_regs(prev.ops[0])); C = set(_regs(prev.ops[3])) if len(prev.ops) > 3 else set()
            if "mfma" in ck:
                ab = set(_regs(cur.ops[1])) | set(_regs(cur.ops[2]))
                cc = set(_regs(cur.ops[3])) if len(cur.ops) > 3 else set()
                if D & ab: n = max(n, 8)
                if D & cc and cc != D: n = max(n, 6)
                if D & cur.wr and cur.wr != D: n = max(n, 6)
            else:
                if D & (cur.rd | cur.wr): n = max(n, 8)
                if "valu" in ck and C & cur.wr: n = max(n, 3)
        if "valu" in pk and "mfma" in ck:
            vw2 = {r for r in prev.wr if r[0] == "v" and r != "vcc"}
            if vw2 & cur.rd: n = max(n, 2)
        if "widestore" in pk:
            data = set(_regs(prev.ops[0] if prev.mn.startswith("buffer_") else prev.ops[1]))
            if data & cur.wr:
                n = max(n, 2 if "valu" in ck else 1)
        return n

    def render(self):
        out = []
        hist = []
        for kind, p in self.lines:
            if kind == "c": out.append("    ; " + p); continue
            if kind == "r": out.append(p); continue
            if kind == "l":
                out.append(p + ":")
                out.append("    s_nop 7")
                hist = []
                continue
            ins = p
            dist = 0; req = 0
            for prev in reversed(hist):
                nd = Asm.need(prev, ins)
                if nd > dist: req = max(req, nd - dist)
                dist += prev.states
                if dist >= 12: break
            if req > 0:
                out.append(f"    s_nop {req-1}")
                hist.append(Ins(f"s_nop {req-1}"))
            out.append("    " + ins.text)
            hist.append(ins)
            if len(hist) > 16: hist = hist[-16:]
            if ins.mn.startswith("s_cbranch") or ins.mn == "s_branch":
                pass
        return "\n".join(out) + "\n"
```

```python
import sys
sys.path.insert(0, "gen")
from asmlib import Asm
from phases import (f32bits, SCALE_LOG2E, LOG2E, v, vr, s, sr, wave_reduce_to63, row_allreduce, to_bf16_lo, round_bf16,
                    dot_slab, sum_chain, reduce8_inwave, reduce16_inwave, barrier)

REF = open("recurrent_scan__sliding_block_cached__swiglu_ffn__decode.s.ref").read()
HEADER = "\n".join(l for l in REF.split(".amdgcn_target")[0].splitlines() if l.startswith(";") and "@launch" not in l and "Override" not in l and "grid=ceil" not in l)
KN = "recurrent_scan__sliding_block_cached__swiglu_ffn__decode_kernel"

LN_RED1, LN_RED2 = 0, 64
XNBUF = 128
QPART = 2816
GUPART = 5120
OG = 23552
ST = 24576
GG = 24704
COEFO = 27008
COEFH = 27072
PS = 27264
PY = 45696
FB = 5120
LDS_BYTES = 64128 + 1408
QBUF = 0
OBUF = 1024
STATS = 9216
EPOCH = 0x0
R1 = 0x1000
R2 = 0x21000
R3 = 0x141000
R3S = 0x1C1000
R4 = 0x200000
WS_BYTES = 268435456
STAMPS = 128 << 20
MAXPOLL = 4096

S_W = 3
S_G, S_S, S_CB, S_KQ = 4, 5, 6, 7
S_T0, S_T1, S_T2, S_T3 = 8, 9, 10, 11
S_EX = 12
SRD_X, SRD_WQ, SRD_GU, SRD_WO, SRD_WD, SRD_WS, SRD_OUT = 40, 44, 48, 52, 56, 60, 64
SRD_K, SRD_V = 44, 48
S_OFFQ2 = 68
S_OFF8 = 68
S_OFFR = 73
S_WAVE = 75
S_TAG = 76
S_M0, S_M1 = 78, 79
S_C = 80
S_TMPA, S_TMPB = 82, 83
V_T, V_LANE, V_RG, V_CH, V_T16 = 0, 1, 2, 3, 4

class Ctx:
    def __init__(self): self.n = 0; self.stmod = " sc1"; self.ldmod = " sc1"
    def lab(self, b): self.n += 1; return f"L_{b}_{self.n}"

class Vm:
    def __init__(self): self.ops = []
    def issue(self, *names): self.ops += list(names)
    def wait(self, name):
        i = max(k for k, n in enumerate(self.ops) if n == name)
        return f"s_waitcnt vmcnt({len(self.ops) - 1 - i})"

class Stamper:
    def __init__(self, on, pfx): self.on = on; self.n = 0; self.pfx = pfx
    def stamp(self, a):
        if not self.on: return
        if self.n == 0:
            for k in range(16): a.I(f"s_mov_b32 s{84+k}, 0")
        a.I(f"s_memrealtime s[100:101]\ns_waitcnt lgkmcnt(0)\ns_mov_b32 s{84 + self.n}, s100")
        self.n += 1
    def stampval(self, a, sreg):
        if not self.on: return
        a.I(f"s_mov_b32 s{84 + self.n}, s{sreg}")
        self.n += 1
    def flush(self, a):
        if not self.on: return
        lab = f"L_stamp_flush_{self.pfx}"
        a.I(f"s_and_b32 s100, s{S_WAVE}, 7\ns_cmp_lg_u32 s100, 0\ns_cbranch_scc1 {lab}")
        for k in range(16): a.I(f"v_mov_b32 v{16+k}, s{84+k}")
        a.I(f"""
        s_lshl_b32 s100, s2, 6
        s_lshl_b32 s101, s{S_WAVE}, 12
        s_add_u32 s100, s100, s101
        s_add_u32 s100, s100, {STAMPS}
        v_mov_b32 v13, s100
        s_mov_b64 exec, 1
        """)
        for k in range(4): a.I(f"buffer_store_dwordx4 {vr(16+4*k,4)}, v13, {sr(SRD_WS)}, 0 offen offset:{16*k}")
        a.I("s_mov_b64 exec, -1")
        a.L(lab)

def masked(a, c, lt, body, name):
    lab = c.lab("skip_" + name)
    a.I(f"v_cmp_gt_u32 vcc, {lt}, v0\ns_and_saveexec_b64 s[{S_EX}:{S_EX+1}], vcc\ns_cbranch_execz {lab}")
    body()
    a.L(lab); a.I("s_mov_b64 exec, -1")

def masked_range(a, c, lo, hi, tmp, body, name):
    lab = c.lab("skip_" + name)
    a.I(f"v_subrev_u32 v{tmp}, {lo}, v0\nv_cmp_gt_u32 vcc, {hi-lo}, v{tmp}\ns_and_saveexec_b64 s[{S_EX}:{S_EX+1}], vcc\ns_cbranch_execz {lab}")
    body()
    a.L(lab); a.I("s_mov_b64 exec, -1")

def srd(a, dst, plo, off_s, nrec):
    if off_s is None: a.I(f"s_mov_b32 s{dst}, s{plo}\ns_mov_b32 s{dst+1}, s{plo+1}")
    else: a.I(f"s_add_u32 s{dst}, s{plo}, s{off_s}\ns_addc_u32 s{dst+1}, s{plo+1}, 0")
    a.I(f"s_mov_b32 s{dst+2}, {nrec}\ns_mov_b32 s{dst+3}, 0x00020000")

def store_granule(a, c, g4, voff, soff):
    a.I(f"v_mov_b32 v{g4+2}, s{S_TAG}\nv_mov_b32 v{g4+3}, s{S_TAG+1}")
    a.I(f"buffer_store_dwordx4 {vr(g4,4)}, v{voff}, {sr(SRD_WS)}, {soff} offen{c.stmod}")

def tagcheck(a, acc, gbases):
    first = True
    for g in gbases:
        for k, st in ((2, S_TAG), (3, S_TAG + 1)):
            if first: a.I(f"v_xor_b32 v{acc}, s{st}, v{g+k}"); first = False
            else: a.I(f"v_xor_b32 v5, s{st}, v{g+k}\nv_or_b32 v{acc}, v{acc}, v5")

SLEEP = 1
EARLY_KV = True
def poll(a, c, issue_loads, gbases, acc, name):
    top = c.lab("poll_" + name); done = c.lab("poll_done_" + name)
    a.I(f"s_mov_b32 s{S_T3}, 0\ns_mov_b64 s[14:15], exec")
    a.L(top)
    issue_loads()
    a.I(f"s_add_u32 s{S_T3}, s{S_T3}, 1\ns_waitcnt vmcnt(0)")
    tagcheck(a, acc, gbases)
    a.I(f"""
    v_cmp_ne_u32 vcc, 0, v{acc}
    s_and_b64 exec, exec, vcc
    s_cbranch_execz {done}
    s_cmp_ge_u32 s{S_T3}, {MAXPOLL}
    s_cbranch_scc1 {done}
    """)
    if SLEEP: a.I(f"s_sleep {SLEEP}")
    a.I(f"s_branch {top}")
    a.L(done)
    a.I("s_mov_b64 exec, s[14:15]")

def poll_multi(a, c, loads, gbases, acc, name):
    n = len(loads)
    M = [16 + 2 * k for k in range(n)]
    top = c.lab("pollm_" + name); done = c.lab("pollm_done_" + name)
    a.I(f"s_mov_b32 s{S_T3}, 0\ns_mov_b64 s[14:15], exec")
    for k in range(n): a.I(f"s_mov_b64 s[{M[k]}:{M[k]+1}], exec")
    a.L(top)
    for k in range(n):
        sk = c.lab(f"pollm_sk{k}_" + name)
        a.I(f"s_mov_b64 exec, s[{M[k]}:{M[k]+1}]\ns_cbranch_execz {sk}")
        loads[k]()
        a.L(sk)
    a.I(f"s_add_u32 s{S_T3}, s{S_T3}, 1\ns_waitcnt vmcnt(0)")
    for k in range(n):
        g = gbases[k]
        a.I(f"""
        s_mov_b64 exec, s[{M[k]}:{M[k]+1}]
        v_xor_b32 v{acc}, s{S_TAG}, v{g+2}
        v_xor_b32 v5, s{S_TAG+1}, v{g+3}
        v_or_b32 v{acc}, v{acc}, v5
        v_cmp_ne_u32 vcc, 0, v{acc}
        s_and_b64 s[{M[k]}:{M[k]+1}], s[{M[k]}:{M[k]+1}], vcc
        """)
    a.I(f"s_or_b64 s[12:13], s[{M[0]}:{M[0]+1}], s[{M[1]}:{M[1]+1}]")
    for k in range(2, n): a.I(f"s_or_b64 s[12:13], s[12:13], s[{M[k]}:{M[k]+1}]")
    a.I(f"""
    s_cbranch_scc0 {done}
    s_cmp_ge_u32 s{S_T3}, {MAXPOLL}
    s_cbranch_scc1 {done}
    """)
    if SLEEP: a.I(f"s_sleep {SLEEP}")
    a.I(f"s_branch {top}")
    a.L(done)
    a.I("s_mov_b64 exec, s[14:15]")

def load_tag(a, c):
    a.I(f"v_mov_b32 v12, {EPOCH}\nbuffer_load_dwordx2 v[10:11], v12, {sr(SRD_WS)}, 0 offen{c.ldmod}")
def finish_tag(a):
    a.I(f"""
    v_readfirstlane_b32 s{S_TAG}, v10
    v_readfirstlane_b32 s{S_TAG+1}, v11
    s_add_u32 s{S_TAG}, s{S_TAG}, 1
    s_addc_u32 s{S_TAG+1}, s{S_TAG+1}, 0
    """)

BULK = " nt"
D_S, D_S2, D_KV = 2, 2, 2
D_GU, D_WQ, D_WO, D_WD = 16, 36, 36, 44
WK = 56

def s_prologue(a, c):
    a.I(f"""
    s_lshr_b32 s{S_G}, s{S_W}, 4
    s_and_b32 s{S_S}, s{S_W}, 15
    s_lshr_b32 s{S_CB}, s{S_S}, 2
    s_and_b32 s{S_KQ}, s{S_S}, 3
    v_lshrrev_b32 v{V_RG}, 3, v{V_LANE}
    v_and_b32 v{V_CH}, 7, v{V_LANE}
    s_mov_b32 s{S_OFFQ2}, {72*8192}
    """)
    for i in range(1, 5): a.I(f"s_mov_b32 s{S_OFF8+i}, {8*i*9216}")
    a.I(f"s_mov_b32 s{S_OFFR}, 9216\ns_mov_b32 s{S_OFFR+1}, 18432")
    srd(a, SRD_X, 16, None, 1152)
    a.I(f"""
    s_mul_i32 s{S_T0}, s{S_KQ}, 1179648
    s_lshl_b32 s{S_T1}, s{S_G}, 9
    s_add_u32 s{S_T0}, s{S_T0}, s{S_T1}
    s_lshl_b32 s{S_T1}, s{S_CB}, 7
    s_add_u32 s{S_T0}, s{S_T0}, s{S_T1}
    s_sub_u32 s{S_T2}, 4718592, s{S_T0}
    """)
    srd(a, SRD_WQ, 22, S_T0, f"s{S_T2}")
    a.I(f"""
    s_cmp_lt_u32 s{S_G}, 8
    s_cselect_b32 s{S_TMPA}, s28, s30
    s_cselect_b32 s{S_TMPB}, s29, s31
    s_mul_i32 s{S_T0}, s{S_S}, 331776
    s_and_b32 s{S_T1}, s{S_G}, 7
    s_mul_i32 s{S_T1}, s{S_T1}, 1152
    s_add_u32 s{S_T0}, s{S_T0}, s{S_T1}
    """)
    srd(a, SRD_GU, S_TMPA, S_T0, 36 * 9216)
    a.I(f"s_mul_i32 s{S_T0}, s{S_W}, 18432"); srd(a, SRD_WO, 24, S_T0, 18432)
    a.I(f"s_mul_i32 s{S_T0}, s{S_W}, 20736"); srd(a, SRD_WD, 32, S_T0, 20736)
    srd(a, SRD_OUT, 34, None, 1152)

def s_issue_x(a): a.I(f"v_lshlrev_b32 v5, 1, v0\nbuffer_load_ushort v15, v5, {sr(SRD_X)}, 0 offen")
def s_issue_wq(a):
    a.I(f"""
    v_lshrrev_b32 v5, 3, v0
    v_and_b32 v6, 7, v0
    v_lshlrev_b32 v5, 13, v5
    v_lshl_add_u32 v5, v6, 4, v5
    buffer_load_dwordx4 {vr(D_WQ,4)}, v5, {sr(SRD_WQ)}, 0 offen{BULK}
    buffer_load_dwordx4 {vr(D_WQ+4,4)}, v5, {sr(SRD_WQ)}, s{S_OFFQ2} offen{BULK}
    """)
def s_gu_addr(a):
    a.I(f"""
    v_mul_u32_u24 v9, 9216, v{V_RG}
    v_lshl_add_u32 v9, v{V_CH}, 4, v9
    s_lshl_b32 s{S_T0}, s{S_WAVE}, 7
    v_add_u32 v9, s{S_T0}, v9
    """)
def s_row_addr(a):
    a.I(f"""
    v_mul_u32_u24 v9, 1152, v{V_RG}
    v_lshl_add_u32 v9, v{V_CH}, 4, v9
    s_lshl_b32 s{S_T0}, s{S_WAVE}, 7
    v_add_u32 v9, s{S_T0}, v9
    """)
def s_issue_gu1(a, i):
    a.I(f"buffer_load_dwordx4 {vr(D_GU+4*i,4)}, v9, {sr(SRD_GU)}, " + ("0" if i == 0 else f"s{S_OFF8+i}") + f" offen{BULK}")
def s_issue_wo(a):
    a.I(f"buffer_load_dwordx4 {vr(D_WO,4)}, v{V_T16}, {sr(SRD_WO)}, 0 offen{BULK}")
    a.I(f"buffer_load_dwordx4 {vr(D_WO+4,4)}, v{V_T16}, {sr(SRD_WO)}, s{S_OFFR} offen{BULK}")
def s_issue_wd(a):
    a.I(f"buffer_load_dwordx4 {vr(D_WD,4)}, v{V_T16}, {sr(SRD_WD)}, 0 offen{BULK}")
    a.I(f"buffer_load_dwordx4 {vr(D_WD+4,4)}, v{V_T16}, {sr(SRD_WD)}, s{S_OFFR} offen{BULK}")
    a.I(f"buffer_load_dwordx4 {vr(D_WD+8,4)}, v{V_T16}, {sr(SRD_WD)}, s{S_OFFR+1} offen{BULK}")

def s_ln(a, c, wait_x):
    XF, A_, B_, Z = WK, WK+1, WK+2, WK+3
    R0 = WK + 4
    MEAN, VAR, D_ = WK+16, WK+17, WK+18
    a.C("layernorm (bf16 rounding points as in the reference)")
    a.I(wait_x)
    a.I(f"v_lshlrev_b32 v{XF}, 16, v15\nv_mov_b32 v{Z}, 0\nv_mov_b32 v{A_}, v{XF}")
    def wg_sum(red, dst):
        wave_reduce_to63(a, A_)
        a.I(f"""
        v_readlane_b32 s{S_T0}, v{A_}, 63
        s_lshl_b32 s{S_T1}, s{S_WAVE}, 2
        v_mov_b32 v{B_}, s{S_T0}
        v_mov_b32 v{A_}, s{S_T1}
        ds_write_b32 v{A_}, v{B_} offset:{red}
        """)
        barrier(a)
        a.I(f"""
        ds_read_b128 {vr(R0,4)}, v{Z} offset:{red}
        ds_read_b128 {vr(R0+4,4)}, v{Z} offset:{red+16}
        ds_read_b32 v{R0+8}, v{Z} offset:{red+32}
        s_waitcnt lgkmcnt(0)
        """)
        sum_chain(a, dst, list(range(R0, R0 + 9)))
        a.I(f"v_mul_f32 v{dst}, {f32bits(1.0/576.0):#x}, v{dst}")
    a.I(f"v_lshlrev_b32 v{B_}, 2, v{V_LANE}\nds_write_b32 v{B_}, v{Z} offset:{XNBUF + 576*4}")
    wg_sum(LN_RED1, MEAN)
    a.I(f"v_sub_f32 v{D_}, v{XF}, v{MEAN}\nv_mul_f32 v{A_}, v{D_}, v{D_}")
    wg_sum(LN_RED2, VAR)
    MB, T1, DEN, XC, RC, Q0, E_ = R0, R0+1, R0+2, R0+3, R0+4, R0+5, R0+6
    round_bf16(a, MB, MEAN); round_bf16(a, T1, VAR)
    a.I(f"v_add_f32 v{T1}, {f32bits(1e-5):#x}, v{T1}"); round_bf16(a, T1, T1)
    a.I(f"v_sqrt_f32 v{DEN}, v{T1}"); round_bf16(a, DEN, DEN)
    a.I(f"v_sub_f32 v{XC}, v{XF}, v{MB}"); round_bf16(a, XC, XC)
    a.I(f"""
    v_rcp_f32 v{RC}, v{DEN}
    v_mul_f32 v{Q0}, v{XC}, v{RC}
    v_fma_f32 v{E_}, -v{Q0}, v{DEN}, v{XC}
    v_fma_f32 v{Q0}, v{E_}, v{RC}, v{Q0}
    """)
    to_bf16_lo(a, Q0, Q0)
    a.I(f"v_lshlrev_b32 v{E_}, 2, v0\nds_write_b32 v{E_}, v{Q0} offset:{XNBUF}")
    barrier(a)

def s_qslab(a, waits):
    CL0, CL1, CH0, CH1, AD = WK, WK+1, WK+2, WK+3, WK+4
    ACC = WK + 8
    a.C("q slab: 144 rows x 64 cols")
    a.I(f"""
    v_lshrrev_b32 v{AD}, 3, v0
    v_lshlrev_b32 v{AD}, 2, v{AD}
    s_mul_i32 s{S_T0}, s{S_KQ}, 576
    v_add_u32 v{AD}, s{S_T0}, v{AD}
    ds_read_b32 v{CL0}, v{AD} offset:{XNBUF}
    ds_read_b32 v{CL1}, v{AD} offset:{XNBUF+288}
    s_waitcnt lgkmcnt(0)
    v_lshlrev_b32 v{CH0}, 16, v{CL0}
    v_lshlrev_b32 v{CH1}, 16, v{CL1}
    """)
    a.I(waits[0]); dot_slab(a, D_WQ, CL0, CH0, ACC, True)
    a.I(waits[1]); dot_slab(a, D_WQ + 4, CL1, CH1, ACC, False)
    reduce8_inwave(a, ACC)
    a.I(f"""
    v_lshrrev_b32 v{CL0}, 4, v{V_LANE}
    v_and_b32 v{CL1}, 1, v{CL0}
    v_lshlrev_b32 v{CL1}, 3, v{CL1}
    v_lshrrev_b32 v{CL0}, 1, v{CL0}
    v_lshl_add_u32 v{CL1}, v{CL0}, 2, v{CL1}
    v_and_b32 v{CL0}, 7, v{V_LANE}
    v_lshl_add_u32 v{CL1}, v{CL0}, 5, v{CL1}
    s_lshl_b32 s{S_T0}, s{S_WAVE}, 8
    v_add_u32 v{CL1}, s{S_T0}, v{CL1}
    ds_write_b32 v{CL1}, v{ACC} offset:{QPART}
    ds_write_b32 v{CL1}, v{ACC+4} offset:{QPART+16}
    """)

def s_publish_q(a, c):
    G = WK; R = WK + 4
    def body():
        a.I("v_lshlrev_b32 v5, 3, v0")
        for wv in range(9): a.I(f"ds_read_b64 {vr(R+2*wv,2)}, v5 offset:{QPART+256*wv}")
        a.I("s_waitcnt lgkmcnt(0)")
        sum_chain(a, G, [R + 2 * wv for wv in range(9)])
        sum_chain(a, G + 1, [R + 2 * wv + 1 for wv in range(9)])
        a.I(f"s_lshl_b32 s{S_T0}, s{S_W}, 9\ns_add_u32 s{S_T0}, s{S_T0}, {R1}")
        store_granule(a, c, G, V_T16, f"s{S_T0}")
    masked(a, c, 32, body, "pubq")

SEL3 = 80
def s_guslab(a, c, vm, D):
    CL, CH, AD = WK, WK + 5, WK + 10
    ACC = WK + 16
    a.C("gate/up slab: 36 rows x 576 cols, wave-owned column blocks")
    s_gu_addr(a)
    for i in range(D): s_issue_gu1(a, i); vm.issue(f"GU{i}")
    a.I(f"s_mul_i32 s{S_T0}, s{S_S}, 144\nv_lshlrev_b32 v{AD}, 2, v{V_RG}\nv_add_u32 v{AD}, s{S_T0}, v{AD}")
    for i in range(5): a.I(f"ds_read_b32 v{CL+i}, v{AD} offset:{XNBUF+32*i}")
    a.I("s_waitcnt lgkmcnt(0)")
    for i in range(5): a.I(f"v_lshlrev_b32 v{CH+i}, 16, v{CL+i}")
    for i in range(5):
        a.I(vm.wait(f"GU{i}"))
        if i + D < 5: s_issue_gu1(a, i + D); vm.issue(f"GU{i+D}")
        dot_slab(a, D_GU + 4 * i, CL + i, CH + i, ACC, i == 0)
    reduce8_inwave(a, ACC)
    X0, Y0, X1, Y1 = ACC, WK, ACC + 4, WK + 1
    G = WK + 4
    a.I(f"v_mov_b32 v{Y0}, v{X0}\nv_mov_b32 v{Y1}, v{X1}")
    a.I(f"v_permlane32_swap_b32 v{X0}, v{Y0}\nv_permlane32_swap_b32 v{X1}, v{Y1}")
    a.I(f"v_cndmask_b32 v{G}, v{X0}, v{X1}, s[{SEL3}:{SEL3+1}]\nv_cndmask_b32 v{G+1}, v{Y0}, v{Y1}, s[{SEL3}:{SEL3+1}]")
    a.I(f"""
    v_lshlrev_b32 v5, 6, v{V_CH}
    v_bfe_u32 v6, v{V_LANE}, 3, 1
    v_lshl_add_u32 v5, v6, 5, v5
    v_bfe_u32 v6, v{V_LANE}, 4, 1
    v_lshl_add_u32 v5, v6, 4, v5
    s_mul_i32 s{S_T0}, s{S_W}, 4608
    s_lshl_b32 s{S_T1}, s{S_WAVE}, 9
    s_add_u32 s{S_T0}, s{S_T0}, s{S_T1}
    s_add_u32 s{S_T0}, s{S_T0}, {R2}
    s_mov_b64 exec, 0xffffffff
    """)
    store_granule(a, c, G, 5, f"s{S_T0}")
    a.I("s_mov_b64 exec, -1")

def s_gather_c(a, c):
    G = WK; ACC = WK + 4
    def body_o():
        a.I(f"""
        s_lshl_b32 s{S_T0}, s{S_G}, 15
        s_lshl_b32 s{S_T1}, s{S_S}, 11
        s_add_u32 s{S_T0}, s{S_T0}, s{S_T1}
        s_add_u32 s{S_T0}, s{S_T0}, {R3}
        """)
        poll(a, c, lambda: a.I(f"buffer_load_dwordx4 {vr(G,4)}, v{V_T16}, {sr(SRD_WS)}, s{S_T0} offen{c.ldmod}"), [G], ACC, "o")
        a.I(f"v_lshlrev_b32 v5, 3, v0\nds_write_b64 v5, {vr(G,2)} offset:{OG}")
    masked(a, c, 128, body_o, "go")
    def body_s():
        a.I(f"""
        s_lshl_b32 s{S_T0}, s{S_G}, 9
        s_lshr_b32 s{S_T1}, s{S_S}, 3
        s_lshl_b32 s{S_T1}, s{S_T1}, 4
        s_add_u32 s{S_T0}, s{S_T0}, s{S_T1}
        s_add_u32 s{S_T0}, s{S_T0}, {R3S}
        v_lshlrev_b32 v7, 5, v6
        """)
        poll(a, c, lambda: a.I(f"buffer_load_dwordx4 {vr(G,4)}, v7, {sr(SRD_WS)}, s{S_T0} offen{c.ldmod}"), [G], ACC, "s")
        a.I(f"v_lshlrev_b32 v5, 3, v6\nds_write_b64 v5, {vr(G,2)} offset:{ST}")
    masked_range(a, c, 128, 144, 6, body_s, "gs")
    def body_g():
        a.I(f"""
        v_mul_u32_u24 v7, 7282, v6
        v_lshrrev_b32 v7, 16, v7
        v_mul_u32_u24 v8, 9, v7
        v_sub_u32 v8, v6, v8
        v_lshrrev_b32 v9, 4, v7
        v_and_b32 v10, 15, v7
        v_lshlrev_b32 v9, 7, v9
        v_add_u32 v9, v9, v10
        v_mul_u32_u24 v9, 288, v9
        v_add_u32 v9, v9, v8
        v_lshlrev_b32 v9, 4, v9
        s_lshr_b32 s{S_T0}, s{S_W}, 5
        s_mul_i32 s{S_T0}, s{S_T0}, {16*288*16}
        s_and_b32 s{S_T1}, s{S_W}, 31
        s_mul_i32 s{S_T1}, s{S_T1}, 144
        s_add_u32 s{S_T0}, s{S_T0}, s{S_T1}
        s_add_u32 s{S_T0}, s{S_T0}, {R2}
        """)
        poll(a, c, lambda: a.I(f"buffer_load_dwordx4 {vr(G,4)}, v9, {sr(SRD_WS)}, s{S_T0} offen{c.ldmod}"), [G], ACC, "g")
        a.I(f"v_lshlrev_b32 v5, 3, v6\nds_write_b64 v5, {vr(G,2)} offset:{GG}")
    masked_range(a, c, 192, 480, 6, body_g, "gg")

def s_combine(a, c):
    lab0 = c.lab("skip_oc")
    S2, F, LS, O4, M, T = WK, WK+2, WK+3, WK+4, WK+8, WK+9
    a.I(f"s_cmp_lg_u32 s{S_WAVE}, 0\ns_cbranch_scc1 {lab0}")
    a.I(f"""
    v_and_b32 v5, 15, v{V_LANE}
    v_lshlrev_b32 v6, 3, v5
    ds_read_b64 {vr(S2,2)}, v6 offset:{ST}
    v_lshlrev_b32 v6, 6, v5
    v_lshrrev_b32 v7, 4, v{V_LANE}
    v_lshl_add_u32 v6, v7, 4, v6
    ds_read_b128 {vr(O4,4)}, v6 offset:{OG}
    s_waitcnt lgkmcnt(0)
    v_mov_b32 v{M}, v{S2}
    """)
    row_allreduce(a, [M], "v_max_f32")
    a.I(f"v_sub_f32 v{F}, v{S2}, v{M}\nv_exp_f32 v{F}, v{F}\nv_mul_f32 v{LS}, v{F}, v{S2+1}")
    for k in range(4): a.I(f"v_mul_f32 v{O4+k}, v{O4+k}, v{F}")
    row_allreduce(a, [LS, O4, O4 + 1, O4 + 2, O4 + 3])
    a.I(f"v_rcp_f32 v{T}, v{LS}")
    for k in range(4): a.I(f"v_mul_f32 v{O4+k}, v{O4+k}, v{T}")
    for k in range(4): to_bf16_lo(a, O4 + k, O4 + k)
    a.I(f"""
    v_lshlrev_b32 v6, 4, v7
    ds_write_b128 v6, {vr(O4,4)} offset:{COEFO}
    v_mov_b32 v{T}, 0
    v_and_b32 v6, 7, v5
    v_lshlrev_b32 v6, 2, v6
    ds_write_b32 v6, v{T} offset:{COEFH+72}
    """)
    a.L(lab0)
    Gv, Uv, T2, E = WK, WK+1, WK+2, WK+3
    def body():
        a.I(f"""
        v_lshrrev_b32 v7, 4, v6
        v_and_b32 v8, 15, v6
        v_mul_u32_u24 v8, 72, v8
        v_lshl_add_u32 v8, v7, 2, v8
        ds_read_b32 v{Gv}, v8 offset:{GG}
        ds_read_b32 v{Uv}, v8 offset:{GG+1152}
        s_waitcnt lgkmcnt(0)
        """)
        row_allreduce(a, [Gv, Uv])
        round_bf16(a, Gv, Gv); round_bf16(a, Uv, Uv)
        a.I(f"""
        v_mul_f32 v{E}, {f32bits(-LOG2E):#x}, v{Gv}
        v_exp_f32 v{E}, v{E}
        v_add_f32 v{E}, 1.0, v{E}
        v_rcp_f32 v{E}, v{E}
        v_mul_f32 v{T2}, v{Gv}, v{E}
        """)
        round_bf16(a, T2, T2)
        a.I(f"v_mul_f32 v{T2}, v{T2}, v{Uv}")
        to_bf16_lo(a, T2, T2)
        a.I(f"v_lshlrev_b32 v8, 2, v7\nds_write_b32 v8, v{T2} offset:{COEFH}")
    masked_range(a, c, 64, 352, 6, body, "hc")

def s_slabs_c(a, c, waitsO, waitsD):
    CO, CD, HO, HD, AD = WK, WK+2, WK+5, WK+7, WK+10
    AS, AY = 16, 24
    a.I(f"v_lshlrev_b32 v{AD}, 2, v{V_RG}")
    for i in range(2): a.I(f"ds_read_b32 v{CO+i}, v{AD} offset:{COEFO+32*i}")
    for i in range(3): a.I(f"ds_read_b32 v{CD+i}, v{AD} offset:{COEFH+32*i}")
    a.I("s_waitcnt lgkmcnt(0)")
    for i in range(2): a.I(f"v_lshlrev_b32 v{HO+i}, 16, v{CO+i}")
    for i in range(3): a.I(f"v_lshlrev_b32 v{HD+i}, 16, v{CD+i}")
    for i in range(2):
        a.I(waitsO[i]); dot_slab(a, D_WO + 4 * i, CO + i, HO + i, AS, i == 0)
    for i in range(3):
        a.I(waitsD[i]); dot_slab(a, D_WD + 4 * i, CD + i, HD + i, AY, i == 0)
    reduce8_inwave(a, AS)
    reduce8_inwave(a, AY)
    G = WK + 12
    a.I(f"v_cndmask_b32 v{G}, v{AS}, v{AS+4}, s[{SEL3}:{SEL3+1}]\nv_cndmask_b32 v{G+1}, v{AY}, v{AY+4}, s[{SEL3}:{SEL3+1}]")
    a.I(f"""
    s_lshl_b32 s{S_T0}, s{S_WAVE}, 3
    v_add_u32 v5, s{S_T0}, v{V_CH}
    v_lshlrev_b32 v5, 15, v5
    v_bfe_u32 v6, v{V_LANE}, 3, 1
    v_lshl_add_u32 v5, v6, 6, v5
    v_bfe_u32 v6, v{V_LANE}, 4, 1
    v_lshl_add_u32 v5, v6, 5, v5
    v_bfe_u32 v6, v{V_LANE}, 5, 1
    v_lshl_add_u32 v5, v6, 4, v5
    s_lshl_b32 s{S_T0}, s{S_W}, 7
    s_add_u32 s{S_T0}, s{S_T0}, {R4}
    """)
    store_granule(a, c, G, 5, f"s{S_T0}")

NCONS = 72
def allreduce_x16_x32(a, r, t, op):
    a.I(f"v_mov_b32 v{t}, v{r}\nv_permlane32_swap_b32 v{r}, v{t}\n{op} v{r}, v{r}, v{t}")
    a.I(f"v_mov_b32 v{t}, v{r}\nv_permlane16_swap_b32 v{r}, v{t}\n{op} v{r}, v{r}, v{t}")

def s_final(a, c, st):
    lab = c.lab("skip_final")
    G = WK; ACC = WK + 16; T = WK + 17
    a.I(f"s_cmp_ge_u32 s{S_W}, {NCONS}\ns_cbranch_scc1 {lab}")
    a.I(f"""
    s_lshl_b32 s{S_T0}, s{S_W}, 15
    s_add_u32 s{S_T0}, s{S_T0}, {R4}
    s_add_u32 s{S_T1}, s{S_T0}, 8192
    s_add_u32 s{S_T2}, s{S_T0}, 16384
    s_add_u32 s{S_TMPA}, s{S_T0}, 24576
    s_lshl_b32 s{S_TMPB}, s{S_W}, 4
    v_and_b32 v7, 7, v{V_LANE}
    v_lshlrev_b32 v7, 1, v7
    v_add_u32 v7, s{S_TMPB}, v7
    buffer_load_ushort v15, v7, {sr(SRD_X)}, 0 offen
    """)
    offs = [S_T0, S_T1, S_T2, S_TMPA]
    def body():
        poll_multi(a, c, [lambda k=k: a.I(f"buffer_load_dwordx4 {vr(G+4*k,4)}, v{V_T16}, {sr(SRD_WS)}, s{offs[k]} offen{c.ldmod}") for k in range(4)],
                   [G + 4 * k for k in range(4)], ACC, "f")
        st.stamp(a); st.stampval(a, S_T3)
        sum_chain(a, G, [G, G + 4, G + 8, G + 12]); sum_chain(a, G + 1, [G + 1, G + 5, G + 9, G + 13])
        a.I(f"v_add_f32 v{G}, v{G}, v{G} row_ror:8\nv_add_f32 v{G+1}, v{G+1}, v{G+1} row_ror:8")
        a.I(f"v_permlane32_swap_b32 v{G}, v{G+1}\nv_add_f32 v{G}, v{G}, v{G+1}")
        a.I(f"v_mov_b32 v{T}, v{G}\nv_permlane16_swap_b32 v{G}, v{T}\nv_add_f32 v{G}, v{G}, v{T}")
        a.I(f"""
        v_lshrrev_b32 v5, 5, v{V_LANE}
        v_lshlrev_b32 v5, 5, v5
        v_and_b32 v6, 7, v{V_LANE}
        v_lshl_add_u32 v5, v6, 2, v5
        s_lshl_b32 s{S_T2}, s{S_WAVE}, 6
        v_add_u32 v5, s{S_T2}, v5
        ds_write_b32 v5, v{G} offset:{FB}
        """)
    masked(a, c, 512, body, "fg")
    barrier(a)
    st.stamp(a)
    lab3 = c.lab("skip_fin2")
    a.I(f"s_cmp_lg_u32 s{S_WAVE}, 0\ns_cbranch_scc1 {lab3}")
    SS, YY, E = WK + 10, WK + 11, WK + 12
    a.I(f"v_lshlrev_b32 v5, 2, v{V_LANE}\nds_read_b32 v{SS}, v5 offset:{FB}\nds_read_b32 v{YY}, v5 offset:{FB+256}\ns_waitcnt lgkmcnt(0)")
    a.I(f"v_add_f32 v{SS}, v{SS}, v{YY}")
    allreduce_x16_x32(a, SS, T, "v_add_f32")
    a.I(f"v_mov_b32 v{YY}, v{SS} row_shl:8")
    round_bf16(a, SS, SS); round_bf16(a, YY, YY)
    a.I(f"""
    v_mul_f32 v{E}, {f32bits(-LOG2E):#x}, v{YY}
    v_exp_f32 v{E}, v{E}
    v_add_f32 v{E}, 1.0, v{E}
    v_rcp_f32 v{E}, v{E}
    v_mul_f32 v{T}, v{YY}, v{E}
    """)
    round_bf16(a, T, T)
    a.I(f"v_mul_f32 v{T}, v{SS}, v{T}")
    round_bf16(a, T, T)
    a.I(f"v_lshlrev_b32 v{E}, 16, v15\nv_add_f32 v{T}, v{E}, v{T}")
    to_bf16_lo(a, T, T)
    a.I(f"""
    s_mov_b64 exec, 0xff
    buffer_store_short v{T}, v7, {sr(SRD_OUT)}, 0 offen
    s_mov_b64 exec, -1
    """)
    lab2 = c.lab("skip_epoch")
    a.I(f"""
    s_cmp_lg_u32 s{S_W}, 0
    s_cbranch_scc1 {lab2}
    v_mov_b32 v8, s{S_TAG}
    v_mov_b32 v9, s{S_TAG+1}
    v_mov_b32 v10, {EPOCH}
    s_mov_b64 exec, 1
    buffer_store_dwordx2 v[8:9], v10, {sr(SRD_WS)}, 0 offen sc1
    s_mov_b64 exec, -1
    """)
    a.L(lab2)
    a.L(lab3)
    a.L(lab)

def role_s(a, c, st):
    vm = Vm()
    s_prologue(a, c)
    a.I(f"s_setprio 3\ns_mov_b32 s{SEL3}, 0xff00ff00\ns_mov_b32 s{SEL3+1}, 0xff00ff00")
    st.stamp(a)
    load_tag(a, c); vm.issue("E")
    s_issue_x(a); vm.issue("X")
    s_issue_wq(a); vm.issue("WQ0", "WQ1")
    a.I(vm.wait("E")); finish_tag(a)
    s_ln(a, c, vm.wait("X"))
    st.stamp(a)
    s_qslab(a, [vm.wait("WQ0"), vm.wait("WQ1")])
    barrier(a)
    s_publish_q(a, c)
    st.stamp(a)
    a.I("s_setprio 0")
    s_guslab(a, c, vm, D_S)
    st.stamp(a)
    s_row_addr(a)
    lds = [("WO0", D_WO, SRD_WO, "0"), ("WO1", D_WO + 4, SRD_WO, f"s{S_OFFR}"), ("WD0", D_WD, SRD_WD, "0"), ("WD1", D_WD + 4, SRD_WD, f"s{S_OFFR}"), ("WD2", D_WD + 8, SRD_WD, f"s{S_OFFR+1}")]
    for k, (nm, d, sd, so) in enumerate(lds):
        if k >= D_S2: a.I(f"s_waitcnt vmcnt({D_S2-1})")
        a.I(f"buffer_load_dwordx4 {vr(d,4)}, v9, {sr(sd)}, {so} offen{BULK}"); vm.issue(nm)
    a.I("s_setprio 3")
    s_gather_c(a, c)
    barrier(a)
    st.stamp(a)
    s_combine(a, c)
    barrier(a)
    s_slabs_c(a, c, [vm.wait("WO0"), vm.wait("WO1")], [vm.wait("WD0"), vm.wait("WD1"), vm.wait("WD2")])
    st.stamp(a)
    s_final(a, c, st)
    st.stamp(a)
    st.flush(a)

D_K, D_V = 16, 32
KW = 48

def kv_prologue(a, c):
    a.I(f"""
    s_lshr_b32 s{S_G}, s{S_W}, 4
    s_and_b32 s{S_S}, s{S_W}, 15
    s_mov_b32 s{S_C}, {f32bits(SCALE_LOG2E):#x}
    s_lshl_b32 s{S_T0}, s{S_G}, 21
    s_lshl_b32 s{S_T1}, s{S_S}, 15
    s_add_u32 s{S_T0}, s{S_T0}, s{S_T1}
    s_add_u32 s{S_T0}, s{S_T0}, 1572864
    """)
    srd(a, SRD_K, 18, S_T0, 32768)
    srd(a, SRD_V, 20, S_T0, 32768)

def kv_issue_paced(a, D):
    a.I(f"""
    v_lshrrev_b32 v5, 6, v0
    v_lshlrev_b32 v5, 12, v5
    v_and_b32 v6, 15, v{V_LANE}
    v_lshrrev_b32 v7, 4, v{V_LANE}
    v_lshl_add_u32 v8, v6, 8, v5
    v_lshl_add_u32 v8, v7, 4, v8
    v_lshl_add_u32 v9, v7, 10, v5
    v_lshl_add_u32 v9, v6, 4, v9
    """)
    k = 0
    for st in range(4):
        if k >= D: a.I(f"s_waitcnt vmcnt({D-1})")
        a.I(f"buffer_load_dwordx4 {vr(D_K+4*st,4)}, v8, {sr(SRD_K)}, 0 offen" + (f" offset:{64*st}" if st else "") + BULK); k += 1
    for i in range(4):
        if k >= D: a.I(f"s_waitcnt vmcnt({D-1})")
        a.I(f"buffer_load_dwordx4 {vr(D_V+4*i,4)}, v9, {sr(SRD_V)}, 0 offen" + (f" offset:{256*i}" if i else "") + BULK); k += 1

def kv_gather_q(a, c, st=None):
    G = KW
    ACC = 15
    lab = c.lab("skip_gq")
    a.I(f"s_cmp_lg_u32 s{S_WAVE}, 8\ns_cbranch_scc1 {lab}")
    a.I(f"""
    v_lshrrev_b32 v6, 5, v{V_LANE}
    v_lshlrev_b32 v6, 11, v6
    v_and_b32 v7, 31, v{V_LANE}
    v_lshl_add_u32 v6, v7, 4, v6
    s_lshl_b32 s{S_T0}, s{S_G}, 13
    s_add_u32 s{S_T0}, s{S_T0}, {R1}
    s_add_u32 s{S_T1}, s{S_T0}, 4096
    """)
    lds = []
    for u, so in ((0, S_T0), (1, S_T1)):
        for k in range(4):
            lds.append(lambda u=u, so=so, k=k: a.I(f"buffer_load_dwordx4 {vr(G+16*u+4*k,4)}, v6, {sr(SRD_WS)}, s{so} offen" + (f" offset:{512*k}" if k else "") + c.ldmod))
    poll_multi(a, c, lds, [G + 4 * k for k in range(8)], ACC, "q")
    if st is not None and st.on: a.I(f"s_mov_b32 s99, s{S_T3}")
    for u in range(2):
        b = G + 16 * u
        sum_chain(a, b, [b, b + 4, b + 8, b + 12]); sum_chain(a, b + 1, [b + 1, b + 5, b + 9, b + 13])
        a.I(f"v_cvt_pk_bf16_f32 v{b}, v{b}, v{b+1}")
    a.I(f"v_lshlrev_b32 v5, 2, v{V_LANE}\nds_write_b32 v5, v{G} offset:{QBUF}\nds_write_b32 v5, v{G+16} offset:{QBUF+256}")
    a.L(lab)

def allreduce_x16_x32_kv(a, r, t, op):
    a.I(f"v_mov_b32 v{t}, v{r}\nv_permlane32_swap_b32 v{r}, v{t}\n{op} v{r}, v{r}, v{t}")
    a.I(f"v_mov_b32 v{t}, v{r}\nv_permlane16_swap_b32 v{r}, v{t}\n{op} v{r}, v{r}, v{t}")

QF = KW
SCR = KW + 16
MXR, TR, MCR, CCR, LR, PKR = 68, 69, 70, 72, 73, 74
MK = 76
BF0, BF1 = KW, KW + 4
OAR = KW + 8

def kv_masks(a):
    a.I(f"""
    v_and_b32 v5, 7, v{V_LANE}
    v_lshrrev_b32 v6, 1, v5
    v_and_b32 v7, 1, v5
    v_mov_b32 v8, 0xffff
    v_lshlrev_b32 v8, v7, v8
    v_mov_b32 v{CCR}, s{S_C}
    """.replace("v_lshlrev_b32 v8, v7, v8", "v_lshlrev_b32 v7, 4, v7\n    v_lshlrev_b32 v8, v7, v8"))
    for t in range(4):
        a.I(f"v_cmp_eq_u32 vcc, {t}, v6\nv_cndmask_b32 v{MK+t}, 0, v8, vcc")

def kv_attn(a, c, waitK, waitV):
    lab = c.lab("skip_attn")
    a.C("attention (MFMA): 16 keys x 2 heads per wave")
    a.I(f"s_cmp_ge_u32 s{S_WAVE}, 8\ns_cbranch_scc1 {lab}")
    a.I(f"""
    v_bfe_u32 v5, v{V_LANE}, 3, 1
    v_lshlrev_b32 v5, 8, v5
    v_lshrrev_b32 v6, 4, v{V_LANE}
    v_lshl_add_u32 v5, v6, 4, v5
    """)
    for st in range(4): a.I(f"ds_read_b128 {vr(QF+4*st,4)}, v5 offset:{QBUF+64*st}")
    a.I(waitK)
    for st in range(4):
        a.I(f"s_waitcnt lgkmcnt({3-st})")
        a.I(f"v_mfma_f32_16x16x32_bf16 {vr(SCR,4)}, {vr(D_K+4*st,4)}, {vr(QF+4*st,4)}, " + ("0" if st == 0 else vr(SCR, 4)))
    a.I(f"v_max3_f32 v{MXR}, v{SCR}, v{SCR+1}, v{SCR+2}\nv_max_f32 v{MXR}, v{MXR}, v{SCR+3}")
    allreduce_x16_x32_kv(a, MXR, TR, "v_max_f32")
    a.I(f"v_mul_f32 v{MCR}, v{MXR}, v{CCR}")
    for r in range(4): a.I(f"v_fma_f32 v{SCR+r}, v{SCR+r}, v{CCR}, -v{MCR}")
    for r in range(4): a.I(f"v_exp_f32 v{SCR+r}, v{SCR+r}")
    a.I(waitV)
    for i in range(4):
        bf = BF0 if i % 2 == 0 else BF1
        a.I(f"v_cvt_pk_bf16_f32 v{PKR}, v{SCR+i}, v{SCR+i}")
        for t in range(4): a.I(f"v_and_b32 v{bf+t}, v{PKR}, v{MK+t}")
        a.I(f"v_mfma_f32_16x16x32_bf16 {vr(OAR,4)}, {vr(D_V+4*i,4)}, {vr(bf,4)}, " + ("0" if i == 0 else vr(OAR, 4)))
    sum_chain(a, LR, [SCR, SCR + 1, SCR + 2, SCR + 3])
    allreduce_x16_x32_kv(a, LR, TR, "v_add_f32")
    a.I(f"s_lshl_b32 s{S_T0}, s{S_WAVE}, 10\nv_lshlrev_b32 v5, 2, v{V_LANE}\nv_add_u32 v5, s{S_T0}, v5")
    for r in range(4): a.I(f"ds_write_b32 v5, v{OAR+r} offset:{OBUF+256*r}")
    a.I(f"""
    v_mov_b32 v{MCR+1}, v{LR}
    s_lshl_b32 s{S_T0}, s{S_WAVE}, 4
    v_add_u32 v5, s{S_T0}, v{V_LANE}
    s_mov_b64 exec, 0x101
    ds_write_b64 v5, {vr(MCR,2)} offset:{STATS}
    s_mov_b64 exec, -1
    """)
    a.L(lab)

def kv_merge_publish(a, c):
    SM = KW; F = KW + 16; OP = D_K
    G = 72; MC, LL = 76, 77; GS = KW
    def body():
        a.I(f"""
        v_bfe_u32 v5, v0, 2, 1
        v_lshlrev_b32 v5, 3, v5
        """)
        for wv in range(8): a.I(f"ds_read_b64 {vr(SM+2*wv,2)}, v5 offset:{STATS+16*wv}")
        a.I(f"""
        v_lshrrev_b32 v6, 5, v0
        v_lshlrev_b32 v6, 8, v6
        v_and_b32 v7, 31, v0
        v_lshl_add_u32 v6, v7, 3, v6
        """)
        for wv in range(8): a.I(f"ds_read_b64 {vr(OP+2*wv,2)}, v6 offset:{OBUF+1024*wv}")
        a.I("s_waitcnt lgkmcnt(8)")
        mcs = [SM + 2 * wv for wv in range(8)]; ls = [SM + 2 * wv + 1 for wv in range(8)]
        a.I(f"v_max3_f32 v{MC}, v{mcs[0]}, v{mcs[1]}, v{mcs[2]}")
        a.I(f"v_max3_f32 v{MC}, v{MC}, v{mcs[3]}, v{mcs[4]}")
        a.I(f"v_max3_f32 v{MC}, v{MC}, v{mcs[5]}, v{mcs[6]}")
        a.I(f"v_max_f32 v{MC}, v{MC}, v{mcs[7]}")
        for wv in range(8): a.I(f"v_sub_f32 v{F+wv}, v{mcs[wv]}, v{MC}")
        for wv in range(8): a.I(f"v_exp_f32 v{F+wv}, v{F+wv}")
        a.I("s_waitcnt lgkmcnt(0)")
        a.I(f"v_mul_f32 v{G}, v{F}, v{OP}\nv_mul_f32 v{G+1}, v{F}, v{OP+1}")
        for wv in range(1, 8):
            a.I(f"v_fmac_f32 v{G}, v{F+wv}, v{OP+2*wv}\nv_fmac_f32 v{G+1}, v{F+wv}, v{OP+2*wv+1}")
        a.I(f"""
        v_bfe_u32 v5, v0, 2, 1
        v_lshlrev_b32 v5, 3, v5
        v_bfe_u32 v6, v0, 3, 2
        v_lshl_add_u32 v5, v6, 1, v5
        v_bfe_u32 v6, v0, 6, 1
        v_add_u32 v5, v5, v6
        v_lshlrev_b32 v5, 11, v5
        v_bfe_u32 v6, v0, 5, 1
        v_lshl_add_u32 v5, v6, 6, v5
        v_and_b32 v6, 3, v0
        v_lshl_add_u32 v5, v6, 4, v5
        s_lshl_b32 s{S_T0}, s{S_G}, 15
        s_lshl_b32 s{S_T1}, s{S_S}, 7
        s_add_u32 s{S_T0}, s{S_T0}, s{S_T1}
        s_add_u32 s{S_T0}, s{S_T0}, {R3}
        """)
        store_granule(a, c, G, 5, f"s{S_T0}")
        lab = c.lab("skip_pst")
        a.I(f"""
        v_and_b32 v6, 0x7b, v0
        v_cmp_eq_u32 vcc, 0, v6
        s_and_saveexec_b64 s[14:15], vcc
        s_cbranch_execz {lab}
        v_mov_b32 v{GS}, v{MC}
        v_mul_f32 v{GS+1}, v{F}, v{ls[0]}
        """)
        for wv in range(1, 8): a.I(f"v_fmac_f32 v{GS+1}, v{F+wv}, v{ls[wv]}")
        a.I(f"""
        v_bfe_u32 v5, v0, 2, 1
        v_lshlrev_b32 v5, 4, v5
        s_lshl_b32 s{S_T0}, s{S_W}, 5
        s_add_u32 s{S_T0}, s{S_T0}, {R3S}
        """)
        store_granule(a, c, GS, 5, f"s{S_T0}")
        a.L(lab)
    masked(a, c, 128, body, "mrg")

def role_kv(a, c, st):
    vm = Vm()
    kv_prologue(a, c)
    a.I("s_setprio 2")
    st.stamp(a)
    load_tag(a, c); vm.issue("E")
    if not EARLY_KV: a.I("s_waitcnt vmcnt(0)")
    lab = c.lab("kv_noload")
    a.I(f"s_cmp_ge_u32 s{S_WAVE}, 8\ns_cbranch_scc1 {lab}")
    kv_masks(a)
    kv_issue_paced(a, D_KV)
    a.I("s_waitcnt vmcnt(0)") if st.on else None
    a.L(lab)
    a.I("s_waitcnt vmcnt(7)")
    lab2 = c.lab("kv_w8")
    a.I(f"s_cmp_lt_u32 s{S_WAVE}, 8\ns_cbranch_scc1 {lab2}\ns_waitcnt vmcnt(0)")
    a.L(lab2)
    finish_tag(a)
    st.stamp(a)
    vm.issue("K0", "K1", "K2", "K3", "V0", "V1", "V2", "V3")
    kv_gather_q(a, c, st)
    barrier(a)
    st.stamp(a)
    kv_attn(a, c, vm.wait("K3"), vm.wait("V3"))
    barrier(a)
    kv_merge_publish(a, c)
    st.stamp(a)
    st.flush(a)

def build(stamps=False):
    a = Asm(); c = Ctx()
    a.raw(f".globl {KN}\n.p2align 8\n.type {KN},@function\n{KN}:")
    a.I(f"""
    s_cmp_ge_u32 s2, 512
    s_cbranch_scc1 L_exit
    s_load_dwordx16 s[16:31], s[0:1], 0
    s_load_dwordx8 s[32:39], s[0:1], 64
    s_and_b32 s{S_W}, s2, 255
    v_and_b32 v{V_LANE}, 63, v0
    v_lshlrev_b32 v{V_T16}, 4, v0
    v_lshrrev_b32 v5, 6, v0
    v_readfirstlane_b32 s{S_WAVE}, v5
    s_waitcnt lgkmcnt(0)
    """)
    srd(a, SRD_WS, 38, None, WS_BYTES)
    a.I("s_cmp_ge_u32 s2, 256\ns_cbranch_scc1 L_role_kv")
    role_s(a, c, Stamper(stamps, "s"))
    a.I("s_branch L_exit")
    a.L("L_role_kv")
    role_kv(a, c, Stamper(stamps, "k"))
    a.L("L_exit")
    a.I("s_endpgm")
    out = HEADER + "\n; two roles in one kernel: ids 0..255 slab/FFN role, ids 256..511 attention role; 2 workgroups per CU, all co-resident\n"
    out += f"; @launch grid=(512,1,1) block=(576,1,1) lds={LDS_BYTES}\n"
    out += '.amdgcn_target "amdgcn-amd-amdhsa--gfx950"\n.text\n' + a.render()
    out += f""".section .rodata,"a"
.p2align 6
.amdhsa_kernel {KN}
  .amdhsa_next_free_vgpr 80
  .amdhsa_next_free_sgpr 102
  .amdhsa_accum_offset 80
  .amdhsa_group_segment_fixed_size 0
  .amdhsa_kernarg_size 96
  .amdhsa_user_sgpr_count 2
  .amdhsa_user_sgpr_kernarg_segment_ptr 1
  .amdhsa_system_sgpr_workgroup_id_x 1
.end_amdhsa_kernel
"""
    return out

if __name__ == "__main__":
    open("v4.s", "w").write(build(False))
    open("v4st.s", "w").write(build(True))
```

```python
import sys
sys.path.insert(0, "gen")
from asmlib import Asm
from phases import (f32bits, SCALE_LOG2E, LOG2E, v, vr, s, sr, wave_reduce_to63, row_allreduce, to_bf16_lo, round_bf16,
                    dot_slab, sum_chain, reduce8_inwave, reduce16_inwave, barrier)

REF = open("recurrent_scan__sliding_block_cached__swiglu_ffn__decode.s.ref").read()
HEADER = "\n".join(l for l in REF.split(".amdgcn_target")[0].splitlines() if l.startswith(";") and "@launch" not in l and "Override" not in l and "grid=ceil" not in l)
KN = "recurrent_scan__sliding_block_cached__swiglu_ffn__decode_kernel"

LN_RED1, LN_RED2 = 0, 64
XNBUF = 128
QPART = 2816
GUPART = 5120
OG = 23552
ST = 24576
GG = 24704
COEFO = 27008
COEFH = 27072
PS = 27264
PY = 45696
FB = 5120
LDS_BYTES = 64128 + 1408
QBUF = 0
OBUF = 1024
STATS = 9216
EPOCH = 0x0
R1 = 0x1000
R2 = 0x21000
R3 = 0x141000
R3S = 0x1C1000
R4 = 0x200000
WS_BYTES = 268435456
STAMPS = 128 << 20
MAXPOLL = 4096

S_W = 3
S_G, S_S, S_CB, S_KQ = 4, 5, 6, 7
S_T0, S_T1, S_T2, S_T3 = 8, 9, 10, 11
S_EX = 12
SRD_X, SRD_WQ, SRD_GU, SRD_WO, SRD_WD, SRD_WS, SRD_OUT = 40, 44, 48, 52, 56, 60, 64
SRD_K, SRD_V = 44, 48
S_OFFQ2 = 68
S_OFF8 = 68
S_OFFR = 73
S_WAVE = 75
S_TAG = 76
S_M0, S_M1 = 78, 79
S_C = 80
S_TMPA, S_TMPB = 82, 83
V_T, V_LANE, V_RG, V_CH, V_T16 = 0, 1, 2, 3, 4

class Ctx:
    def __init__(self): self.n = 0; self.stmod = " sc1"; self.ldmod = " sc1"
    def lab(self, b): self.n += 1; return f"L_{b}_{self.n}"

class Vm:
    def __init__(self): self.ops = []
    def issue(self, *names): self.ops += list(names)
    def wait(self, name):
        i = max(k for k, n in enumerate(self.ops) if n == name)
        return f"s_waitcnt vmcnt({len(self.ops) - 1 - i})"

class Stamper:
    def __init__(self, on, pfx): self.on = on; self.n = 0; self.pfx = pfx
    def stamp(self, a):
        if not self.on: return
        if self.n == 0:
            for k in range(16): a.I(f"s_mov_b32 s{84+k}, 0")
        a.I(f"s_memrealtime s[100:101]\ns_waitcnt lgkmcnt(0)\ns_mov_b32 s{84 + self.n}, s100")
        self.n += 1
    def stampval(self, a, sreg):
        if not self.on: return
        a.I(f"s_mov_b32 s{84 + self.n}, s{sreg}")
        self.n += 1
    def flush(self, a):
        if not self.on: return
        lab = f"L_stamp_flush_{self.pfx}"
        a.I(f"s_and_b32 s100, s{S_WAVE}, 7\ns_cmp_lg_u32 s100, 0\ns_cbranch_scc1 {lab}")
        for k in range(16): a.I(f"v_mov_b32 v{16+k}, s{84+k}")
        a.I(f"""
        s_lshl_b32 s100, s2, 6
        s_lshl_b32 s101, s{S_WAVE}, 12
        s_add_u32 s100, s100, s101
        s_add_u32 s100, s100, {STAMPS}
        v_mov_b32 v13, s100
        s_mov_b64 exec, 1
        """)
        for k in range(4): a.I(f"buffer_store_dwordx4 {vr(16+4*k,4)}, v13, {sr(SRD_WS)}, 0 offen offset:{16*k}")
        a.I("s_mov_b64 exec, -1")
        a.L(lab)

def masked(a, c, lt, body, name):
    lab = c.lab("skip_" + name)
    a.I(f"v_cmp_gt_u32 vcc, {lt}, v0\ns_and_saveexec_b64 s[{S_EX}:{S_EX+1}], vcc\ns_cbranch_execz {lab}")
    body()
    a.L(lab); a.I("s_mov_b64 exec, -1")

def masked_range(a, c, lo, hi, tmp, body, name):
    lab = c.lab("skip_" + name)
    a.I(f"v_subrev_u32 v{tmp}, {lo}, v0\nv_cmp_gt_u32 vcc, {hi-lo}, v{tmp}\ns_and_saveexec_b64 s[{S_EX}:{S_EX+1}], vcc\ns_cbranch_execz {lab}")
    body()
    a.L(lab); a.I("s_mov_b64 exec, -1")

def srd(a, dst, plo, off_s, nrec):
    if off_s is None: a.I(f"s_mov_b32 s{dst}, s{plo}\ns_mov_b32 s{dst+1}, s{plo+1}")
    else: a.I(f"s_add_u32 s{dst}, s{plo}, s{off_s}\ns_addc_u32 s{dst+1}, s{plo+1}, 0")
    a.I(f"s_mov_b32 s{dst+2}, {nrec}\ns_mov_b32 s{dst+3}, 0x00020000")

def store_granule(a, c, g4, voff, soff):
    a.I(f"v_mov_b32 v{g4+2}, s{S_TAG}\nv_mov_b32 v{g4+3}, s{S_TAG+1}")
    a.I(f"buffer_store_dwordx4 {vr(g4,4)}, v{voff}, {sr(SRD_WS)}, {soff} offen{c.stmod}")

def tagcheck(a, acc, gbases):
    first = True
    for g in gbases:
        for k, st in ((2, S_TAG), (3, S_TAG + 1)):
            if first: a.I(f"v_xor_b32 v{acc}, s{st}, v{g+k}"); first = False
            else: a.I(f"v_xor_b32 v5, s{st}, v{g+k}\nv_or_b32 v{acc}, v{acc}, v5")

SLEEP = 0
EARLY_KV = True
def poll(a, c, issue_loads, gbases, acc, name):
    top = c.lab("poll_" + name); done = c.lab("poll_done_" + name)
    a.I(f"s_mov_b32 s{S_T3}, 0\ns_mov_b64 s[14:15], exec")
    a.L(top)
    issue_loads()
    a.I(f"s_add_u32 s{S_T3}, s{S_T3}, 1\ns_waitcnt vmcnt(0)")
    tagcheck(a, acc, gbases)
    a.I(f"""
    v_cmp_ne_u32 vcc, 0, v{acc}
    s_and_b64 exec, exec, vcc
    s_cbranch_execz {done}
    s_cmp_ge_u32 s{S_T3}, {MAXPOLL}
    s_cbranch_scc1 {done}
    """)
    if SLEEP: a.I(f"s_sleep {SLEEP}")
    a.I(f"s_branch {top}")
    a.L(done)
    a.I("s_mov_b64 exec, s[14:15]")

def poll_multi(a, c, loads, gbases, acc, name):
    n = len(loads)
    M = [16 + 2 * k for k in range(n)]
    top = c.lab("pollm_" + name); done = c.lab("pollm_done_" + name)
    a.I(f"s_mov_b32 s{S_T3}, 0\ns_mov_b64 s[14:15], exec")
    for k in range(n): a.I(f"s_mov_b64 s[{M[k]}:{M[k]+1}], exec")
    a.L(top)
    for k in range(n):
        sk = c.lab(f"pollm_sk{k}_" + name)
        a.I(f"s_mov_b64 exec, s[{M[k]}:{M[k]+1}]\ns_cbranch_execz {sk}")
        loads[k]()
        a.L(sk)
    a.I(f"s_add_u32 s{S_T3}, s{S_T3}, 1\ns_waitcnt vmcnt(0)")
    for k in range(n):
        g = gbases[k]
        a.I(f"""
        s_mov_b64 exec, s[{M[k]}:{M[k]+1}]
        v_xor_b32 v{acc}, s{S_TAG}, v{g+2}
        v_xor_b32 v5, s{S_TAG+1}, v{g+3}
        v_or_b32 v{acc}, v{acc}, v5
        v_cmp_ne_u32 vcc, 0, v{acc}
        s_and_b64 s[{M[k]}:{M[k]+1}], s[{M[k]}:{M[k]+1}], vcc
        """)
    a.I(f"s_or_b64 s[12:13], s[{M[0]}:{M[0]+1}], s[{M[1]}:{M[1]+1}]")
    for k in range(2, n): a.I(f"s_or_b64 s[12:13], s[12:13], s[{M[k]}:{M[k]+1}]")
    a.I(f"""
    s_cbranch_scc0 {done}
    s_cmp_ge_u32 s{S_T3}, {MAXPOLL}
    s_cbranch_scc1 {done}
    """)
    if SLEEP: a.I(f"s_sleep {SLEEP}")
    a.I(f"s_branch {top}")
    a.L(done)
    a.I("s_mov_b64 exec, s[14:15]")

def load_tag(a, c):
    a.I(f"v_mov_b32 v12, {EPOCH}\nbuffer_load_dwordx2 v[10:11], v12, {sr(SRD_WS)}, 0 offen{c.ldmod}")
def finish_tag(a):
    a.I(f"""
    v_readfirstlane_b32 s{S_TAG}, v10
    v_readfirstlane_b32 s{S_TAG+1}, v11
    s_add_u32 s{S_TAG}, s{S_TAG}, 1
    s_addc_u32 s{S_TAG+1}, s{S_TAG+1}, 0
    """)

BULK = " nt"
D_S, D_S2, D_KV = 2, 2, 2
D_GU, D_WQ, D_WO, D_WD = 16, 36, 36, 44
WK = 56

def s_prologue(a, c):
    a.I(f"""
    s_lshr_b32 s{S_G}, s{S_W}, 4
    s_and_b32 s{S_S}, s{S_W}, 15
    s_lshr_b32 s{S_CB}, s{S_S}, 2
    s_and_b32 s{S_KQ}, s{S_S}, 3
    s_mov_b32 s{S_OFFQ2}, {72*8192}
    """)
    srd(a, SRD_X, 16, None, 1152)
    a.I(f"""
    s_mul_i32 s{S_T0}, s{S_KQ}, 1179648
    s_lshl_b32 s{S_T1}, s{S_G}, 9
    s_add_u32 s{S_T0}, s{S_T0}, s{S_T1}
    s_lshl_b32 s{S_T1}, s{S_CB}, 7
    s_add_u32 s{S_T0}, s{S_T0}, s{S_T1}
    s_sub_u32 s{S_T2}, 4718592, s{S_T0}
    """)
    srd(a, SRD_WQ, 22, S_T0, f"s{S_T2}")

def s_prologue_b(a, c):
    a.I(f"""
    v_lshrrev_b32 v{V_RG}, 3, v{V_LANE}
    v_and_b32 v{V_CH}, 7, v{V_LANE}
    """)
    for i in range(1, 5): a.I(f"s_mov_b32 s{S_OFF8+i}, {8*i*9216}")
    a.I(f"s_mov_b32 s{S_OFFR}, 9216\ns_mov_b32 s{S_OFFR+1}, 18432")
    a.I(f"""
    s_cmp_lt_u32 s{S_G}, 8
    s_cselect_b32 s{S_TMPA}, s28, s30
    s_cselect_b32 s{S_TMPB}, s29, s31
    s_mul_i32 s{S_T0}, s{S_S}, 331776
    s_and_b32 s{S_T1}, s{S_G}, 7
    s_mul_i32 s{S_T1}, s{S_T1}, 1152
    s_add_u32 s{S_T0}, s{S_T0}, s{S_T1}
    """)
    srd(a, SRD_GU, S_TMPA, S_T0, 36 * 9216)
    a.I(f"s_mul_i32 s{S_T0}, s{S_W}, 18432"); srd(a, SRD_WO, 24, S_T0, 18432)
    a.I(f"s_mul_i32 s{S_T0}, s{S_W}, 20736"); srd(a, SRD_WD, 32, S_T0, 20736)
    srd(a, SRD_OUT, 34, None, 1152)

def s_issue_x(a): a.I(f"v_lshlrev_b32 v5, 1, v0\nv_mov_b32 v6, 0\nbuffer_load_ushort v15, v5, {sr(SRD_X)}, 0 offen\nbuffer_load_ushort v14, v6, {sr(SRD_X)}, 0 offen")
def s_issue_wq(a):
    a.I(f"""
    v_lshrrev_b32 v5, 3, v0
    v_and_b32 v6, 7, v0
    v_lshlrev_b32 v5, 13, v5
    v_lshl_add_u32 v5, v6, 4, v5
    buffer_load_dwordx4 {vr(D_WQ,4)}, v5, {sr(SRD_WQ)}, 0 offen{BULK}
    buffer_load_dwordx4 {vr(D_WQ+4,4)}, v5, {sr(SRD_WQ)}, s{S_OFFQ2} offen{BULK}
    """)
def s_gu_addr(a):
    a.I(f"""
    v_mul_u32_u24 v9, 9216, v{V_RG}
    v_lshl_add_u32 v9, v{V_CH}, 4, v9
    s_lshl_b32 s{S_T0}, s{S_WAVE}, 7
    v_add_u32 v9, s{S_T0}, v9
    """)
def s_row_addr(a):
    a.I(f"""
    v_mul_u32_u24 v9, 1152, v{V_RG}
    v_lshl_add_u32 v9, v{V_CH}, 4, v9
    s_lshl_b32 s{S_T0}, s{S_WAVE}, 7
    v_add_u32 v9, s{S_T0}, v9
    """)
def s_issue_gu1(a, i):
    a.I(f"buffer_load_dwordx4 {vr(D_GU+4*i,4)}, v9, {sr(SRD_GU)}, " + ("0" if i == 0 else f"s{S_OFF8+i}") + f" offen{BULK}")
def s_issue_wo(a):
    a.I(f"buffer_load_dwordx4 {vr(D_WO,4)}, v{V_T16}, {sr(SRD_WO)}, 0 offen{BULK}")
    a.I(f"buffer_load_dwordx4 {vr(D_WO+4,4)}, v{V_T16}, {sr(SRD_WO)}, s{S_OFFR} offen{BULK}")
def s_issue_wd(a):
    a.I(f"buffer_load_dwordx4 {vr(D_WD,4)}, v{V_T16}, {sr(SRD_WD)}, 0 offen{BULK}")
    a.I(f"buffer_load_dwordx4 {vr(D_WD+4,4)}, v{V_T16}, {sr(SRD_WD)}, s{S_OFFR} offen{BULK}")
    a.I(f"buffer_load_dwordx4 {vr(D_WD+8,4)}, v{V_T16}, {sr(SRD_WD)}, s{S_OFFR+1} offen{BULK}")

def s_ln(a, c, wait_x):
    A_, B_, XF = WK, WK+1, WK+2
    R0 = WK + 4
    MEAN, VAR, CC_ = WK+22, WK+23, WK+3
    a.C("layernorm (bf16 rounding points as in the reference)")
    a.I(wait_x)
    a.I(f"""
    v_lshlrev_b32 v{XF}, 16, v15
    v_lshlrev_b32 v{CC_}, 16, v14
    v_sub_f32 v{A_}, v{XF}, v{CC_}
    v_mul_f32 v{B_}, v{A_}, v{A_}
    """)
    for sh in (1, 2, 4, 8):
        a.I(f"v_add_f32 v{A_}, v{A_}, v{A_} row_shr:{sh}\nv_add_f32 v{B_}, v{B_}, v{B_} row_shr:{sh}")
    for m, rm in ((15, "0xa"), (31, "0xc")):
        a.I(f"v_add_f32 v{A_}, v{A_}, v{A_} row_bcast:{m} row_mask:{rm}\nv_add_f32 v{B_}, v{B_}, v{B_} row_bcast:{m} row_mask:{rm}")
    a.I(f"""
    s_lshl_b32 s{S_T1}, s{S_WAVE}, 3
    v_mov_b32 v5, s{S_T1}
    v_mov_b32 v6, 0
    v_lshlrev_b32 v7, 2, v{V_LANE}
    ds_write_b32 v7, v6 offset:{XNBUF + 576*4}
    s_mov_b32 exec_lo, 0
    s_mov_b32 exec_hi, 0x80000000
    ds_write_b64 v5, {vr(A_,2)} offset:{LN_RED1}
    s_mov_b64 exec, -1
    """)
    barrier(a)
    a.I(f"ds_read_b128 {vr(R0,4)}, v6 offset:{LN_RED1}")
    for k in range(1, 4): a.I(f"ds_read_b128 {vr(R0+4*k,4)}, v6 offset:{LN_RED1+16*k}")
    a.I(f"ds_read_b64 {vr(R0+16,2)}, v6 offset:{LN_RED1+64}\ns_waitcnt lgkmcnt(0)")
    sum_chain(a, MEAN, [R0 + 2 * k for k in range(9)])
    sum_chain(a, VAR, [R0 + 2 * k + 1 for k in range(9)])
    a.I(f"""
    v_mul_f32 v{MEAN}, {f32bits(1.0/576.0):#x}, v{MEAN}
    v_mul_f32 v{VAR}, {f32bits(1.0/576.0):#x}, v{VAR}
    v_fma_f32 v{VAR}, -v{MEAN}, v{MEAN}, v{VAR}
    v_max_f32 v{VAR}, 0, v{VAR}
    v_add_f32 v{MEAN}, v{MEAN}, v{CC_}
    """)
    MB, T1, DEN, XC, RC, Q0, E_ = R0, R0+1, R0+2, R0+3, R0+4, R0+5, R0+6
    round_bf16(a, MB, MEAN); round_bf16(a, T1, VAR)
    a.I(f"v_add_f32 v{T1}, {f32bits(1e-5):#x}, v{T1}"); round_bf16(a, T1, T1)
    a.I(f"v_sqrt_f32 v{DEN}, v{T1}"); round_bf16(a, DEN, DEN)
    a.I(f"v_sub_f32 v{XC}, v{XF}, v{MB}"); round_bf16(a, XC, XC)
    a.I(f"""
    v_rcp_f32 v{RC}, v{DEN}
    v_mul_f32 v{Q0}, v{XC}, v{RC}
    v_fma_f32 v{E_}, -v{Q0}, v{DEN}, v{XC}
    v_fma_f32 v{Q0}, v{E_}, v{RC}, v{Q0}
    """)
    to_bf16_lo(a, Q0, Q0)
    a.I(f"v_lshlrev_b32 v{E_}, 2, v0\nds_write_b32 v{E_}, v{Q0} offset:{XNBUF}")
    barrier(a)

def s_qslab(a, waits):
    CL0, CL1, CH0, CH1, AD = WK, WK+1, WK+2, WK+3, WK+4
    ACC = WK + 8
    a.C("q slab: 144 rows x 64 cols")
    a.I(f"""
    v_lshrrev_b32 v{AD}, 3, v0
    v_lshlrev_b32 v{AD}, 2, v{AD}
    s_mul_i32 s{S_T0}, s{S_KQ}, 576
    v_add_u32 v{AD}, s{S_T0}, v{AD}
    ds_read_b32 v{CL0}, v{AD} offset:{XNBUF}
    ds_read_b32 v{CL1}, v{AD} offset:{XNBUF+288}
    s_waitcnt lgkmcnt(0)
    v_lshlrev_b32 v{CH0}, 16, v{CL0}
    v_lshlrev_b32 v{CH1}, 16, v{CL1}
    """)
    a.I(waits[0]); dot_slab(a, D_WQ, CL0, CH0, ACC, True)
    a.I(waits[1]); dot_slab(a, D_WQ + 4, CL1, CH1, ACC, False)
    reduce8_inwave(a, ACC)
    a.I(f"""
    v_lshrrev_b32 v{CL0}, 4, v{V_LANE}
    v_and_b32 v{CL1}, 1, v{CL0}
    v_lshlrev_b32 v{CL1}, 3, v{CL1}
    v_lshrrev_b32 v{CL0}, 1, v{CL0}
    v_lshl_add_u32 v{CL1}, v{CL0}, 2, v{CL1}
    v_and_b32 v{CL0}, 7, v{V_LANE}
    v_lshl_add_u32 v{CL1}, v{CL0}, 5, v{CL1}
    s_lshl_b32 s{S_T0}, s{S_WAVE}, 8
    v_add_u32 v{CL1}, s{S_T0}, v{CL1}
    ds_write_b32 v{CL1}, v{ACC} offset:{QPART}
    ds_write_b32 v{CL1}, v{ACC+4} offset:{QPART+16}
    """)

def s_publish_q(a, c):
    G = WK; R = WK + 4
    def body():
        a.I("v_lshlrev_b32 v5, 3, v0")
        for wv in range(9): a.I(f"ds_read_b64 {vr(R+2*wv,2)}, v5 offset:{QPART+256*wv}")
        a.I("s_waitcnt lgkmcnt(0)")
        sum_chain(a, G, [R + 2 * wv for wv in range(9)])
        sum_chain(a, G + 1, [R + 2 * wv + 1 for wv in range(9)])
        a.I(f"s_lshl_b32 s{S_T0}, s{S_W}, 9\ns_add_u32 s{S_T0}, s{S_T0}, {R1}")
        store_granule(a, c, G, V_T16, f"s{S_T0}")
    masked(a, c, 32, body, "pubq")

SEL3 = 80
def s_guslab(a, c, vm, D):
    CL, CH, AD = WK, WK + 5, WK + 10
    ACC = WK + 16
    a.C("gate/up slab: 36 rows x 576 cols, wave-owned column blocks")
    s_gu_addr(a)
    for i in range(D): s_issue_gu1(a, i); vm.issue(f"GU{i}")
    a.I(f"s_mul_i32 s{S_T0}, s{S_S}, 144\nv_lshlrev_b32 v{AD}, 2, v{V_RG}\nv_add_u32 v{AD}, s{S_T0}, v{AD}")
    for i in range(5): a.I(f"ds_read_b32 v{CL+i}, v{AD} offset:{XNBUF+32*i}")
    a.I("s_waitcnt lgkmcnt(0)")
    for i in range(5): a.I(f"v_lshlrev_b32 v{CH+i}, 16, v{CL+i}")
    for i in range(5):
        a.I(vm.wait(f"GU{i}"))
        if i + D < 5: s_issue_gu1(a, i + D); vm.issue(f"GU{i+D}")
        dot_slab(a, D_GU + 4 * i, CL + i, CH + i, ACC, i == 0)
    reduce8_inwave(a, ACC)
    X0, Y0, X1, Y1 = ACC, WK, ACC + 4, WK + 1
    G = WK + 4
    a.I(f"v_mov_b32 v{Y0}, v{X0}\nv_mov_b32 v{Y1}, v{X1}")
    a.I(f"v_permlane32_swap_b32 v{X0}, v{Y0}\nv_permlane32_swap_b32 v{X1}, v{Y1}")
    a.I(f"v_cndmask_b32 v{G}, v{X0}, v{X1}, s[{SEL3}:{SEL3+1}]\nv_cndmask_b32 v{G+1}, v{Y0}, v{Y1}, s[{SEL3}:{SEL3+1}]")
    a.I(f"""
    v_lshlrev_b32 v5, 6, v{V_CH}
    v_bfe_u32 v6, v{V_LANE}, 3, 1
    v_lshl_add_u32 v5, v6, 5, v5
    v_bfe_u32 v6, v{V_LANE}, 4, 1
    v_lshl_add_u32 v5, v6, 4, v5
    s_mul_i32 s{S_T0}, s{S_W}, 4608
    s_lshl_b32 s{S_T1}, s{S_WAVE}, 9
    s_add_u32 s{S_T0}, s{S_T0}, s{S_T1}
    s_add_u32 s{S_T0}, s{S_T0}, {R2}
    s_mov_b64 exec, 0xffffffff
    """)
    store_granule(a, c, G, 5, f"s{S_T0}")
    a.I("s_mov_b64 exec, -1")

def s_gather_c(a, c):
    G = WK; ACC = WK + 4
    def body_o():
        a.I(f"""
        s_lshl_b32 s{S_T0}, s{S_G}, 15
        s_lshl_b32 s{S_T1}, s{S_S}, 11
        s_add_u32 s{S_T0}, s{S_T0}, s{S_T1}
        s_add_u32 s{S_T0}, s{S_T0}, {R3}
        """)
        poll(a, c, lambda: a.I(f"buffer_load_dwordx4 {vr(G,4)}, v{V_T16}, {sr(SRD_WS)}, s{S_T0} offen{c.ldmod}"), [G], ACC, "o")
        a.I(f"v_lshlrev_b32 v5, 3, v0\nds_write_b64 v5, {vr(G,2)} offset:{OG}")
    masked(a, c, 128, body_o, "go")
    def body_s():
        a.I(f"""
        s_lshl_b32 s{S_T0}, s{S_G}, 9
        s_lshr_b32 s{S_T1}, s{S_S}, 3
        s_lshl_b32 s{S_T1}, s{S_T1}, 4
        s_add_u32 s{S_T0}, s{S_T0}, s{S_T1}
        s_add_u32 s{S_T0}, s{S_T0}, {R3S}
        v_lshlrev_b32 v7, 5, v6
        """)
        poll(a, c, lambda: a.I(f"buffer_load_dwordx4 {vr(G,4)}, v7, {sr(SRD_WS)}, s{S_T0} offen{c.ldmod}"), [G], ACC, "s")
        a.I(f"v_lshlrev_b32 v5, 3, v6\nds_write_b64 v5, {vr(G,2)} offset:{ST}")
    masked_range(a, c, 128, 144, 6, body_s, "gs")
    def body_g():
        a.I(f"""
        v_mul_u32_u24 v7, 7282, v6
        v_lshrrev_b32 v7, 16, v7
        v_mul_u32_u24 v8, 9, v7
        v_sub_u32 v8, v6, v8
        v_lshrrev_b32 v9, 4, v7
        v_and_b32 v10, 15, v7
        v_lshlrev_b32 v9, 7, v9
        v_add_u32 v9, v9, v10
        v_mul_u32_u24 v9, 288, v9
        v_add_u32 v9, v9, v8
        v_lshlrev_b32 v9, 4, v9
        s_lshr_b32 s{S_T0}, s{S_W}, 5
        s_mul_i32 s{S_T0}, s{S_T0}, {16*288*16}
        s_and_b32 s{S_T1}, s{S_W}, 31
        s_mul_i32 s{S_T1}, s{S_T1}, 144
        s_add_u32 s{S_T0}, s{S_T0}, s{S_T1}
        s_add_u32 s{S_T0}, s{S_T0}, {R2}
        """)
        poll(a, c, lambda: a.I(f"buffer_load_dwordx4 {vr(G,4)}, v9, {sr(SRD_WS)}, s{S_T0} offen{c.ldmod}"), [G], ACC, "g")
        a.I(f"v_lshlrev_b32 v5, 3, v6\nds_write_b64 v5, {vr(G,2)} offset:{GG}")
    masked_range(a, c, 192, 480, 6, body_g, "gg")

def s_combine(a, c):
    lab0 = c.lab("skip_oc")
    S2, F, LS, O4, M, T = WK, WK+2, WK+3, WK+4, WK+8, WK+9
    a.I(f"s_cmp_lg_u32 s{S_WAVE}, 0\ns_cbranch_scc1 {lab0}")
    a.I(f"""
    v_and_b32 v5, 15, v{V_LANE}
    v_lshlrev_b32 v6, 3, v5
    ds_read_b64 {vr(S2,2)}, v6 offset:{ST}
    v_lshlrev_b32 v6, 6, v5
    v_lshrrev_b32 v7, 4, v{V_LANE}
    v_lshl_add_u32 v6, v7, 4, v6
    ds_read_b128 {vr(O4,4)}, v6 offset:{OG}
    s_waitcnt lgkmcnt(0)
    v_mov_b32 v{M}, v{S2}
    """)
    row_allreduce(a, [M], "v_max_f32")
    a.I(f"v_sub_f32 v{F}, v{S2}, v{M}\nv_exp_f32 v{F}, v{F}\nv_mul_f32 v{LS}, v{F}, v{S2+1}")
    for k in range(4): a.I(f"v_mul_f32 v{O4+k}, v{O4+k}, v{F}")
    row_allreduce(a, [LS, O4, O4 + 1, O4 + 2, O4 + 3])
    a.I(f"v_rcp_f32 v{T}, v{LS}")
    for k in range(4): a.I(f"v_mul_f32 v{O4+k}, v{O4+k}, v{T}")
    for k in range(4): to_bf16_lo(a, O4 + k, O4 + k)
    a.I(f"""
    v_lshlrev_b32 v6, 4, v7
    ds_write_b128 v6, {vr(O4,4)} offset:{COEFO}
    v_mov_b32 v{T}, 0
    v_and_b32 v6, 7, v5
    v_lshlrev_b32 v6, 2, v6
    ds_write_b32 v6, v{T} offset:{COEFH+72}
    """)
    a.L(lab0)
    Gv, Uv, T2, E = WK, WK+1, WK+2, WK+3
    def body():
        a.I(f"""
        v_lshrrev_b32 v7, 4, v6
        v_and_b32 v8, 15, v6
        v_mul_u32_u24 v8, 72, v8
        v_lshl_add_u32 v8, v7, 2, v8
        ds_read_b32 v{Gv}, v8 offset:{GG}
        ds_read_b32 v{Uv}, v8 offset:{GG+1152}
        s_waitcnt lgkmcnt(0)
        """)
        row_allreduce(a, [Gv, Uv])
        round_bf16(a, Gv, Gv); round_bf16(a, Uv, Uv)
        a.I(f"""
        v_mul_f32 v{E}, {f32bits(-LOG2E):#x}, v{Gv}
        v_exp_f32 v{E}, v{E}
        v_add_f32 v{E}, 1.0, v{E}
        v_rcp_f32 v{E}, v{E}
        v_mul_f32 v{T2}, v{Gv}, v{E}
        """)
        round_bf16(a, T2, T2)
        a.I(f"v_mul_f32 v{T2}, v{T2}, v{Uv}")
        to_bf16_lo(a, T2, T2)
        a.I(f"v_lshlrev_b32 v8, 2, v7\nds_write_b32 v8, v{T2} offset:{COEFH}")
    masked_range(a, c, 64, 352, 6, body, "hc")

def s_slabs_c(a, c, waitsO, waitsD):
    CO, CD, HO, HD, AD = WK, WK+2, WK+5, WK+7, WK+10
    AS, AY = 16, 24
    a.I(f"v_lshlrev_b32 v{AD}, 2, v{V_RG}")
    for i in range(2): a.I(f"ds_read_b32 v{CO+i}, v{AD} offset:{COEFO+32*i}")
    for i in range(3): a.I(f"ds_read_b32 v{CD+i}, v{AD} offset:{COEFH+32*i}")
    a.I("s_waitcnt lgkmcnt(0)")
    for i in range(2): a.I(f"v_lshlrev_b32 v{HO+i}, 16, v{CO+i}")
    for i in range(3): a.I(f"v_lshlrev_b32 v{HD+i}, 16, v{CD+i}")
    for i in range(2):
        a.I(waitsO[i]); dot_slab(a, D_WO + 4 * i, CO + i, HO + i, AS, i == 0)
    for i in range(3):
        a.I(waitsD[i]); dot_slab(a, D_WD + 4 * i, CD + i, HD + i, AY, i == 0)
    reduce8_inwave(a, AS)
    reduce8_inwave(a, AY)
    G = WK + 12
    a.I(f"v_cndmask_b32 v{G}, v{AS}, v{AS+4}, s[{SEL3}:{SEL3+1}]\nv_cndmask_b32 v{G+1}, v{AY}, v{AY+4}, s[{SEL3}:{SEL3+1}]")
    a.I(f"""
    s_lshl_b32 s{S_T0}, s{S_WAVE}, 3
    v_add_u32 v5, s{S_T0}, v{V_CH}
    v_lshlrev_b32 v5, 15, v5
    v_bfe_u32 v6, v{V_LANE}, 3, 1
    v_lshl_add_u32 v5, v6, 6, v5
    v_bfe_u32 v6, v{V_LANE}, 4, 1
    v_lshl_add_u32 v5, v6, 5, v5
    v_bfe_u32 v6, v{V_LANE}, 5, 1
    v_lshl_add_u32 v5, v6, 4, v5
    s_lshl_b32 s{S_T0}, s{S_W}, 7
    s_add_u32 s{S_T0}, s{S_T0}, {R4}
    """)
    store_granule(a, c, G, 5, f"s{S_T0}")

NCONS = 72
def allreduce_x16_x32(a, r, t, op):
    a.I(f"v_mov_b32 v{t}, v{r}\nv_permlane32_swap_b32 v{r}, v{t}\n{op} v{r}, v{r}, v{t}")
    a.I(f"v_mov_b32 v{t}, v{r}\nv_permlane16_swap_b32 v{r}, v{t}\n{op} v{r}, v{r}, v{t}")

def s_final(a, c, st):
    lab = c.lab("skip_final")
    G = WK; ACC = WK + 16; T = WK + 17
    a.I(f"s_cmp_ge_u32 s{S_W}, {NCONS}\ns_cbranch_scc1 {lab}")
    a.I(f"""
    s_lshl_b32 s{S_T0}, s{S_W}, 15
    s_add_u32 s{S_T0}, s{S_T0}, {R4}
    s_add_u32 s{S_T1}, s{S_T0}, 8192
    s_add_u32 s{S_T2}, s{S_T0}, 16384
    s_add_u32 s{S_TMPA}, s{S_T0}, 24576
    s_lshl_b32 s{S_TMPB}, s{S_W}, 4
    v_and_b32 v7, 7, v{V_LANE}
    v_lshlrev_b32 v7, 1, v7
    v_add_u32 v7, s{S_TMPB}, v7
    buffer_load_ushort v15, v7, {sr(SRD_X)}, 0 offen
    """)
    offs = [S_T0, S_T1, S_T2, S_TMPA]
    def body():
        poll_multi(a, c, [lambda k=k: a.I(f"buffer_load_dwordx4 {vr(G+4*k,4)}, v{V_T16}, {sr(SRD_WS)}, s{offs[k]} offen{c.ldmod}") for k in range(4)],
                   [G + 4 * k for k in range(4)], ACC, "f")
        st.stamp(a); st.stampval(a, S_T3)
        sum_chain(a, G, [G, G + 4, G + 8, G + 12]); sum_chain(a, G + 1, [G + 1, G + 5, G + 9, G + 13])
        a.I(f"v_add_f32 v{G}, v{G}, v{G} row_ror:8\nv_add_f32 v{G+1}, v{G+1}, v{G+1} row_ror:8")
        a.I(f"v_permlane32_swap_b32 v{G}, v{G+1}\nv_add_f32 v{G}, v{G}, v{G+1}")
        a.I(f"v_mov_b32 v{T}, v{G}\nv_permlane16_swap_b32 v{G}, v{T}\nv_add_f32 v{G}, v{G}, v{T}")
        a.I(f"""
        v_lshrrev_b32 v5, 5, v{V_LANE}
        v_lshlrev_b32 v5, 5, v5
        v_and_b32 v6, 7, v{V_LANE}
        v_lshl_add_u32 v5, v6, 2, v5
        s_lshl_b32 s{S_T2}, s{S_WAVE}, 6
        v_add_u32 v5, s{S_T2}, v5
        ds_write_b32 v5, v{G} offset:{FB}
        """)
    masked(a, c, 512, body, "fg")
    barrier(a)
    st.stamp(a)
    lab3 = c.lab("skip_fin2")
    a.I(f"s_cmp_lg_u32 s{S_WAVE}, 0\ns_cbranch_scc1 {lab3}")
    SS, YY, E = WK + 10, WK + 11, WK + 12
    a.I(f"v_lshlrev_b32 v5, 2, v{V_LANE}\nds_read_b32 v{SS}, v5 offset:{FB}\nds_read_b32 v{YY}, v5 offset:{FB+256}\ns_waitcnt lgkmcnt(0)")
    a.I(f"v_add_f32 v{SS}, v{SS}, v{YY}")
    allreduce_x16_x32(a, SS, T, "v_add_f32")
    a.I(f"v_mov_b32 v{YY}, v{SS} row_shl:8")
    round_bf16(a, SS, SS); round_bf16(a, YY, YY)
    a.I(f"""
    v_mul_f32 v{E}, {f32bits(-LOG2E):#x}, v{YY}
    v_exp_f32 v{E}, v{E}
    v_add_f32 v{E}, 1.0, v{E}
    v_rcp_f32 v{E}, v{E}
    v_mul_f32 v{T}, v{YY}, v{E}
    """)
    round_bf16(a, T, T)
    a.I(f"v_mul_f32 v{T}, v{SS}, v{T}")
    round_bf16(a, T, T)
    a.I(f"v_lshlrev_b32 v{E}, 16, v15\nv_add_f32 v{T}, v{E}, v{T}")
    to_bf16_lo(a, T, T)
    a.I(f"""
    s_mov_b64 exec, 0xff
    buffer_store_short v{T}, v7, {sr(SRD_OUT)}, 0 offen
    s_mov_b64 exec, -1
    """)
    lab2 = c.lab("skip_epoch")
    a.I(f"""
    s_cmp_lg_u32 s{S_W}, 0
    s_cbranch_scc1 {lab2}
    v_mov_b32 v8, s{S_TAG}
    v_mov_b32 v9, s{S_TAG+1}
    v_mov_b32 v10, {EPOCH}
    s_mov_b64 exec, 1
    buffer_store_dwordx2 v[8:9], v10, {sr(SRD_WS)}, 0 offen sc1
    s_mov_b64 exec, -1
    """)
    a.L(lab2)
    a.L(lab3)
    a.L(lab)

def role_s(a, c, st):
    vm = Vm()
    s_prologue(a, c)
    a.I(f"s_setprio 3\ns_mov_b32 s{SEL3}, 0xff00ff00\ns_mov_b32 s{SEL3+1}, 0xff00ff00")
    st.stamp(a)
    load_tag(a, c); vm.issue("E")
    s_issue_x(a); vm.issue("X0", "X")
    s_issue_wq(a); vm.issue("WQ0", "WQ1")
    s_prologue_b(a, c)
    a.I(vm.wait("E")); finish_tag(a)
    s_ln(a, c, vm.wait("X"))
    st.stamp(a)
    s_qslab(a, [vm.wait("WQ0"), vm.wait("WQ1")])
    barrier(a)
    s_publish_q(a, c)
    st.stamp(a)
    a.I("s_setprio 0")
    s_guslab(a, c, vm, D_S)
    st.stamp(a)
    s_row_addr(a)
    lds = [("WO0", D_WO, SRD_WO, "0"), ("WO1", D_WO + 4, SRD_WO, f"s{S_OFFR}"), ("WD0", D_WD, SRD_WD, "0"), ("WD1", D_WD + 4, SRD_WD, f"s{S_OFFR}"), ("WD2", D_WD + 8, SRD_WD, f"s{S_OFFR+1}")]
    for k, (nm, d, sd, so) in enumerate(lds):
        if k >= D_S2: a.I(f"s_waitcnt vmcnt({D_S2-1})")
        a.I(f"buffer_load_dwordx4 {vr(d,4)}, v9, {sr(sd)}, {so} offen{BULK}"); vm.issue(nm)
    a.I("s_setprio 3")
    s_gather_c(a, c)
    barrier(a)
    st.stamp(a)
    s_combine(a, c)
    barrier(a)
    s_slabs_c(a, c, [vm.wait("WO0"), vm.wait("WO1")], [vm.wait("WD0"), vm.wait("WD1"), vm.wait("WD2")])
    st.stamp(a)
    s_final(a, c, st)
    st.stamp(a)
    st.flush(a)

D_K, D_V = 16, 32
KW = 48

def kv_prologue(a, c):
    a.I(f"""
    s_lshr_b32 s{S_G}, s{S_W}, 4
    s_and_b32 s{S_S}, s{S_W}, 15
    s_mov_b32 s{S_C}, {f32bits(SCALE_LOG2E):#x}
    s_lshl_b32 s{S_T0}, s{S_G}, 21
    s_lshl_b32 s{S_T1}, s{S_S}, 15
    s_add_u32 s{S_T0}, s{S_T0}, s{S_T1}
    s_add_u32 s{S_T0}, s{S_T0}, 1572864
    """)
    srd(a, SRD_K, 18, S_T0, 32768)
    srd(a, SRD_V, 20, S_T0, 32768)

def kv_issue_paced(a, D):
    a.I(f"""
    v_lshrrev_b32 v5, 6, v0
    v_lshlrev_b32 v5, 12, v5
    v_and_b32 v6, 15, v{V_LANE}
    v_lshrrev_b32 v7, 4, v{V_LANE}
    v_lshl_add_u32 v8, v6, 8, v5
    v_lshl_add_u32 v8, v7, 4, v8
    v_lshl_add_u32 v9, v7, 10, v5
    v_lshl_add_u32 v9, v6, 4, v9
    """)
    k = 0
    for st in range(4):
        if k >= D: a.I(f"s_waitcnt vmcnt({D-1})")
        a.I(f"buffer_load_dwordx4 {vr(D_K+4*st,4)}, v8, {sr(SRD_K)}, 0 offen" + (f" offset:{64*st}" if st else "") + BULK); k += 1
    for i in range(4):
        if k >= D: a.I(f"s_waitcnt vmcnt({D-1})")
        a.I(f"buffer_load_dwordx4 {vr(D_V+4*i,4)}, v9, {sr(SRD_V)}, 0 offen" + (f" offset:{256*i}" if i else "") + BULK); k += 1

def kv_gather_q(a, c, st=None):
    G = KW
    ACC = 15
    lab = c.lab("skip_gq")
    a.I(f"s_cmp_lg_u32 s{S_WAVE}, 8\ns_cbranch_scc1 {lab}")
    a.I(f"""
    v_lshrrev_b32 v6, 5, v{V_LANE}
    v_lshlrev_b32 v6, 11, v6
    v_and_b32 v7, 31, v{V_LANE}
    v_lshl_add_u32 v6, v7, 4, v6
    s_lshl_b32 s{S_T0}, s{S_G}, 13
    s_add_u32 s{S_T0}, s{S_T0}, {R1}
    s_add_u32 s{S_T1}, s{S_T0}, 4096
    """)
    lds = []
    for u, so in ((0, S_T0), (1, S_T1)):
        for k in range(4):
            lds.append(lambda u=u, so=so, k=k: a.I(f"buffer_load_dwordx4 {vr(G+16*u+4*k,4)}, v6, {sr(SRD_WS)}, s{so} offen" + (f" offset:{512*k}" if k else "") + c.ldmod))
    poll_multi(a, c, lds, [G + 4 * k for k in range(8)], ACC, "q")
    if st is not None and st.on: a.I(f"s_mov_b32 s99, s{S_T3}")
    for u in range(2):
        b = G + 16 * u
        sum_chain(a, b, [b, b + 4, b + 8, b + 12]); sum_chain(a, b + 1, [b + 1, b + 5, b + 9, b + 13])
        a.I(f"v_cvt_pk_bf16_f32 v{b}, v{b}, v{b+1}")
    a.I(f"v_lshlrev_b32 v5, 2, v{V_LANE}\nds_write_b32 v5, v{G} offset:{QBUF}\nds_write_b32 v5, v{G+16} offset:{QBUF+256}")
    a.L(lab)

def allreduce_x16_x32_kv(a, r, t, op):
    a.I(f"v_mov_b32 v{t}, v{r}\nv_permlane32_swap_b32 v{r}, v{t}\n{op} v{r}, v{r}, v{t}")
    a.I(f"v_mov_b32 v{t}, v{r}\nv_permlane16_swap_b32 v{r}, v{t}\n{op} v{r}, v{r}, v{t}")

QF = KW
SCR = KW + 16
MXR, TR, MCR, CCR, LR, PKR = 68, 69, 70, 72, 73, 74
MK = 76
BF0, BF1 = KW, KW + 4
OAR = KW + 8

def kv_masks(a):
    a.I(f"""
    v_and_b32 v5, 7, v{V_LANE}
    v_lshrrev_b32 v6, 1, v5
    v_and_b32 v7, 1, v5
    v_mov_b32 v8, 0xffff
    v_lshlrev_b32 v8, v7, v8
    v_mov_b32 v{CCR}, s{S_C}
    """.replace("v_lshlrev_b32 v8, v7, v8", "v_lshlrev_b32 v7, 4, v7\n    v_lshlrev_b32 v8, v7, v8"))
    for t in range(4):
        a.I(f"v_cmp_eq_u32 vcc, {t}, v6\nv_cndmask_b32 v{MK+t}, 0, v8, vcc")

def kv_attn(a, c, waitK, waitV):
    lab = c.lab("skip_attn")
    a.C("attention (MFMA): 16 keys x 2 heads per wave")
    a.I(f"s_cmp_ge_u32 s{S_WAVE}, 8\ns_cbranch_scc1 {lab}")
    a.I(f"""
    v_bfe_u32 v5, v{V_LANE}, 3, 1
    v_lshlrev_b32 v5, 8, v5
    v_lshrrev_b32 v6, 4, v{V_LANE}
    v_lshl_add_u32 v5, v6, 4, v5
    """)
    for st in range(4): a.I(f"ds_read_b128 {vr(QF+4*st,4)}, v5 offset:{QBUF+64*st}")
    a.I(waitK)
    for st in range(4):
        a.I(f"s_waitcnt lgkmcnt({3-st})")
        a.I(f"v_mfma_f32_16x16x32_bf16 {vr(SCR,4)}, {vr(D_K+4*st,4)}, {vr(QF+4*st,4)}, " + ("0" if st == 0 else vr(SCR, 4)))
    a.I(f"v_max3_f32 v{MXR}, v{SCR}, v{SCR+1}, v{SCR+2}\nv_max_f32 v{MXR}, v{MXR}, v{SCR+3}")
    allreduce_x16_x32_kv(a, MXR, TR, "v_max_f32")
    a.I(f"v_mul_f32 v{MCR}, v{MXR}, v{CCR}")
    for r in range(4): a.I(f"v_fma_f32 v{SCR+r}, v{SCR+r}, v{CCR}, -v{MCR}")
    for r in range(4): a.I(f"v_exp_f32 v{SCR+r}, v{SCR+r}")
    a.I(waitV)
    for i in range(4):
        bf = BF0 if i % 2 == 0 else BF1
        a.I(f"v_cvt_pk_bf16_f32 v{PKR}, v{SCR+i}, v{SCR+i}")
        for t in range(4): a.I(f"v_and_b32 v{bf+t}, v{PKR}, v{MK+t}")
        a.I(f"v_mfma_f32_16x16x32_bf16 {vr(OAR,4)}, {vr(D_V+4*i,4)}, {vr(bf,4)}, " + ("0" if i == 0 else vr(OAR, 4)))
    sum_chain(a, LR, [SCR, SCR + 1, SCR + 2, SCR + 3])
    allreduce_x16_x32_kv(a, LR, TR, "v_add_f32")
    a.I(f"s_lshl_b32 s{S_T0}, s{S_WAVE}, 10\nv_lshlrev_b32 v5, 2, v{V_LANE}\nv_add_u32 v5, s{S_T0}, v5")
    for r in range(4): a.I(f"ds_write_b32 v5, v{OAR+r} offset:{OBUF+256*r}")
    a.I(f"""
    v_mov_b32 v{MCR+1}, v{LR}
    s_lshl_b32 s{S_T0}, s{S_WAVE}, 4
    v_add_u32 v5, s{S_T0}, v{V_LANE}
    s_mov_b64 exec, 0x101
    ds_write_b64 v5, {vr(MCR,2)} offset:{STATS}
    s_mov_b64 exec, -1
    """)
    a.L(lab)

def kv_merge_publish(a, c):
    SM = KW; F = KW + 16; OP = D_K
    G = 72; MC, LL = 76, 77; GS = KW
    def body():
        a.I(f"""
        v_bfe_u32 v5, v0, 2, 1
        v_lshlrev_b32 v5, 3, v5
        """)
        for wv in range(8): a.I(f"ds_read_b64 {vr(SM+2*wv,2)}, v5 offset:{STATS+16*wv}")
        a.I(f"""
        v_lshrrev_b32 v6, 5, v0
        v_lshlrev_b32 v6, 8, v6
        v_and_b32 v7, 31, v0
        v_lshl_add_u32 v6, v7, 3, v6
        """)
        for wv in range(8): a.I(f"ds_read_b64 {vr(OP+2*wv,2)}, v6 offset:{OBUF+1024*wv}")
        a.I("s_waitcnt lgkmcnt(8)")
        mcs = [SM + 2 * wv for wv in range(8)]; ls = [SM + 2 * wv + 1 for wv in range(8)]
        a.I(f"v_max3_f32 v{MC}, v{mcs[0]}, v{mcs[1]}, v{mcs[2]}")
        a.I(f"v_max3_f32 v{MC}, v{MC}, v{mcs[3]}, v{mcs[4]}")
        a.I(f"v_max3_f32 v{MC}, v{MC}, v{mcs[5]}, v{mcs[6]}")
        a.I(f"v_max_f32 v{MC}, v{MC}, v{mcs[7]}")
        for wv in range(8): a.I(f"v_sub_f32 v{F+wv}, v{mcs[wv]}, v{MC}")
        for wv in range(8): a.I(f"v_exp_f32 v{F+wv}, v{F+wv}")
        a.I("s_waitcnt lgkmcnt(0)")
        a.I(f"v_mul_f32 v{G}, v{F}, v{OP}\nv_mul_f32 v{G+1}, v{F}, v{OP+1}")
        for wv in range(1, 8):
            a.I(f"v_fmac_f32 v{G}, v{F+wv}, v{OP+2*wv}\nv_fmac_f32 v{G+1}, v{F+wv}, v{OP+2*wv+1}")
        a.I(f"""
        v_bfe_u32 v5, v0, 2, 1
        v_lshlrev_b32 v5, 3, v5
        v_bfe_u32 v6, v0, 3, 2
        v_lshl_add_u32 v5, v6, 1, v5
        v_bfe_u32 v6, v0, 6, 1
        v_add_u32 v5, v5, v6
        v_lshlrev_b32 v5, 11, v5
        v_bfe_u32 v6, v0, 5, 1
        v_lshl_add_u32 v5, v6, 6, v5
        v_and_b32 v6, 3, v0
        v_lshl_add_u32 v5, v6, 4, v5
        s_lshl_b32 s{S_T0}, s{S_G}, 15
        s_lshl_b32 s{S_T1}, s{S_S}, 7
        s_add_u32 s{S_T0}, s{S_T0}, s{S_T1}
        s_add_u32 s{S_T0}, s{S_T0}, {R3}
        """)
        store_granule(a, c, G, 5, f"s{S_T0}")
        lab = c.lab("skip_pst")
        a.I(f"""
        v_and_b32 v6, 0x7b, v0
        v_cmp_eq_u32 vcc, 0, v6
        s_and_saveexec_b64 s[14:15], vcc
        s_cbranch_execz {lab}
        v_mov_b32 v{GS}, v{MC}
        v_mul_f32 v{GS+1}, v{F}, v{ls[0]}
        """)
        for wv in range(1, 8): a.I(f"v_fmac_f32 v{GS+1}, v{F+wv}, v{ls[wv]}")
        a.I(f"""
        v_bfe_u32 v5, v0, 2, 1
        v_lshlrev_b32 v5, 4, v5
        s_lshl_b32 s{S_T0}, s{S_W}, 5
        s_add_u32 s{S_T0}, s{S_T0}, {R3S}
        """)
        store_granule(a, c, GS, 5, f"s{S_T0}")
        a.L(lab)
    masked(a, c, 128, body, "mrg")

def role_kv(a, c, st):
    vm = Vm()
    kv_prologue(a, c)
    a.I("s_setprio 2")
    st.stamp(a)
    load_tag(a, c); vm.issue("E")
    if not EARLY_KV: a.I("s_waitcnt vmcnt(0)")
    lab = c.lab("kv_noload")
    a.I(f"s_cmp_ge_u32 s{S_WAVE}, 8\ns_cbranch_scc1 {lab}")
    kv_masks(a)
    kv_issue_paced(a, D_KV)
    a.I("s_waitcnt vmcnt(0)") if st.on else None
    a.L(lab)
    a.I("s_waitcnt vmcnt(7)")
    lab2 = c.lab("kv_w8")
    a.I(f"s_cmp_lt_u32 s{S_WAVE}, 8\ns_cbranch_scc1 {lab2}\ns_waitcnt vmcnt(0)")
    a.L(lab2)
    finish_tag(a)
    st.stamp(a)
    vm.issue("K0", "K1", "K2", "K3", "V0", "V1", "V2", "V3")
    kv_gather_q(a, c, st)
    barrier(a)
    st.stamp(a)
    kv_attn(a, c, vm.wait("K3"), vm.wait("V3"))
    barrier(a)
    kv_merge_publish(a, c)
    st.stamp(a)
    st.flush(a)

def build(stamps=False):
    a = Asm(); c = Ctx()
    a.raw(f".globl {KN}\n.p2align 8\n.type {KN},@function\n{KN}:")
    a.I(f"""
    s_cmp_ge_u32 s2, 512
    s_cbranch_scc1 L_exit
    s_load_dwordx16 s[16:31], s[0:1], 0
    s_load_dwordx8 s[32:39], s[0:1], 64
    s_and_b32 s{S_W}, s2, 255
    v_and_b32 v{V_LANE}, 63, v0
    v_lshlrev_b32 v{V_T16}, 4, v0
    v_lshrrev_b32 v5, 6, v0
    v_readfirstlane_b32 s{S_WAVE}, v5
    s_waitcnt lgkmcnt(0)
    """)
    srd(a, SRD_WS, 38, None, WS_BYTES)
    a.I("s_cmp_ge_u32 s2, 256\ns_cbranch_scc1 L_role_kv")
    role_s(a, c, Stamper(stamps, "s"))
    a.I("s_branch L_exit")
    a.L("L_role_kv")
    role_kv(a, c, Stamper(stamps, "k"))
    a.L("L_exit")
    a.I("s_endpgm")
    out = HEADER + "\n; two roles in one kernel: ids 0..255 slab/FFN role, ids 256..511 attention role; 2 workgroups per CU, all co-resident\n"
    out += f"; @launch grid=(512,1,1) block=(576,1,1) lds={LDS_BYTES}\n"
    out += '.amdgcn_target "amdgcn-amd-amdhsa--gfx950"\n.text\n' + a.render()
    out += f""".section .rodata,"a"
.p2align 6
.amdhsa_kernel {KN}
  .amdhsa_next_free_vgpr 80
  .amdhsa_next_free_sgpr 102
  .amdhsa_accum_offset 80
  .amdhsa_group_segment_fixed_size 0
  .amdhsa_kernarg_size 96
  .amdhsa_user_sgpr_count 2
  .amdhsa_user_sgpr_kernarg_segment_ptr 1
  .amdhsa_system_sgpr_workgroup_id_x 1
.end_amdhsa_kernel
"""
    return out

if __name__ == "__main__":
    open("v5.s", "w").write(build(False))
    open("v5st.s", "w").write(build(True))
```

```python
import re

TRANS = ("v_exp_f32", "v_log_f32", "v_rcp_f32", "v_rsq_f32", "v_sqrt_f32", "v_sin_f32", "v_cos_f32")

def _regs(tok):
    tok = tok.strip()
    neg = tok.startswith("-")
    if neg: tok = tok[1:]
    m = re.fullmatch(r"([vs])(\d+)", tok)
    if m: return [m.group(1) + m.group(2)]
    m = re.fullmatch(r"([vs])\[(\d+):(\d+)\]", tok)
    if m: return [m.group(1) + str(i) for i in range(int(m.group(2)), int(m.group(3)) + 1)]
    if tok == "vcc": return ["vcc"]
    if tok in ("exec",): return ["exec"]
    return []

def _split_ops(s):
    ops, depth, cur = [], 0, ""
    for ch in s:
        if ch == "[": depth += 1
        if ch == "]": depth -= 1
        if ch == "," and depth == 0:
            ops.append(cur.strip()); cur = ""
        else:
            cur += ch
    if cur.strip(): ops.append(cur.strip())
    return ops

class Ins:
    __slots__ = ("text", "mn", "ops", "mods", "rd", "wr", "kind", "states")
    def __init__(self, text):
        self.text = text
        t = text.strip()
        mn, _, rest = t.partition(" ")
        self.mn = mn
        ops = _split_ops(rest)
        mods = ""
        if ops:
            last = ops[-1].split()
            if len(last) > 1:
                ops[-1] = last[0]; mods = " ".join(last[1:])
        self.ops, self.mods = ops, mods
        self.rd, self.wr = set(), set()
        self.kind = set()
        self.states = 1
        self.classify()

    def classify(self):
        mn, ops, mods = self.mn, self.ops, self.mods
        k = self.kind
        if mn == "s_nop":
            self.states = int(ops[0], 0) + 1; k.add("nop"); return
        if mn.startswith("s_"):
            k.add("salu"); return
        if mn.startswith("buffer_") or mn.startswith("global_") or mn.startswith("flat_"):
            k.add("vmem")
            is_store = "_store_" in mn
            is_atomic = "_atomic_" in mn
            regs = [_regs(o) for o in ops]
            if mn in ("buffer_inv", "buffer_wbl2"): return
            if is_store:
                for r in regs: self.rd.update(r)
                if mn.endswith("x4") or mn.endswith("x3"):
                    k.add("widestore")
            elif is_atomic:
                for r in regs: self.rd.update(r)
            else:
                self.wr.update(regs[0])
                for r in regs[1:]: self.rd.update(r)
            return
        if mn.startswith("ds_"):
            k.add("ds")
            regs = [_regs(o) for o in ops]
            if mn.startswith("ds_read") or mn.startswith("ds_bpermute") or mn.startswith("ds_permute") or mn.startswith("ds_swizzle"):
                self.wr.update(regs[0])
                for r in regs[1:]: self.rd.update(r)
            else:
                for r in regs: self.rd.update(r)
            return
        if mn.startswith("v_mfma"):
            k.add("mfma")
            regs = [_regs(o) for o in ops]
            self.wr.update(regs[0])
            for r in regs[1:]: self.rd.update(r)
            return
        if mn.startswith("v_"):
            k.add("valu")
            regs = [_regs(o) for o in ops]
            base = mn.replace("_e32", "").replace("_e64", "").replace("_dpp", "")
            if base in TRANS: k.add("trans")
            if base.startswith("v_dot2"): k.add("dot")
            if re.search(r"(row_|quad_perm|wave_)", mods): k.add("dpp")
            if base.startswith("v_permlane") and base.endswith("_swap_b32"):
                k.add("permswap")
                for r in regs: self.rd.update(r); self.wr.update(r)
                return
            if base in ("v_readlane_b32", "v_readfirstlane_b32"):
                k.add("readlane")
            if base == "v_writelane_b32": k.add("writelane")
            self.wr.update(regs[0])
            start = 1
            if base in ("v_add_co_u32", "v_sub_co_u32", "v_addc_co_u32", "v_subb_co_u32", "v_div_scale_f32", "v_mad_u64_u32"):
                self.wr.update(regs[1]); start = 2
            for r in regs[start:]: self.rd.update(r)
            if base in ("v_fmac_f32", "v_dot2c_f32_bf16", "v_writelane_b32") : self.rd.update(regs[0])
            if base.startswith("v_cndmask") and len(ops) == 3: self.rd.add("vcc")
            if base == "v_cndmask_b32" and len(ops) == 3: self.rd.add("vcc")
            if "dpp" in k: self.rd.update(regs[0])
            return
        raise ValueError("unknown instr: " + self.text)

class Asm:
    def __init__(self):
        self.lines = []
    def I(self, text):
        for t in text.strip().split("\n"):
            t = t.split(";")[0].strip()
            if t: self.lines.append(("i", Ins(t)))
    def C(self, text): self.lines.append(("c", text))
    def L(self, name, pad=True): self.lines.append(("l" if pad else "ln", name))
    def raw(self, text): self.lines.append(("r", text))

    @staticmethod
    def need(prev, cur):
        n = 0
        pk, ck = prev.kind, cur.kind
        if "valu" in pk:
            vw = {r for r in prev.wr if r[0] == "v" and r != "vcc"}
            sw = {r for r in prev.wr if r[0] == "s" or r == "vcc"}
            if vw:
                if "dpp" in ck and vw & cur.rd: n = max(n, 2)
                if "readlane" in ck and vw & cur.rd: n = max(n, 1)
                if "permswap" in ck and vw & cur.rd: n = max(n, 2)
                if "trans" in pk and "valu" in ck and vw & cur.rd: n = max(n, 1)
                if "dot" in pk:
                    touched = vw & (cur.rd | cur.wr)
                    if touched:
                        if "dot" in ck and cur.mn == prev.mn:
                            ab = set(_regs(cur.ops[1])) | set(_regs(cur.ops[2]))
                            if vw & ab: n = max(n, 3)
                        else:
                            n = max(n, 3)
            if sw:
                if "valu" in ck and sw & cur.rd: n = max(n, 2)
                if ("readlane" in ck or "writelane" in ck) and len(cur.ops) == 3 and sw & set(_regs(cur.ops[2])): n = max(n, 4)
                if "vmem" in ck and sw & cur.rd: n = max(n, 5)
        if "mfma" in pk:
            D = set(_regs(prev.ops[0])); C = set(_regs(prev.ops[3])) if len(prev.ops) > 3 else set()
            if "mfma" in ck:
                ab = set(_regs(cur.ops[1])) | set(_regs(cur.ops[2]))
                cc = set(_regs(cur.ops[3])) if len(cur.ops) > 3 else set()
                if D & ab: n = max(n, 8)
                if D & cc and cc != D: n = max(n, 6)
                if D & cur.wr and cur.wr != D: n = max(n, 6)
            else:
                if D & (cur.rd | cur.wr): n = max(n, 8)
                if "valu" in ck and C & cur.wr: n = max(n, 3)
        if "valu" in pk and "mfma" in ck:
            vw2 = {r for r in prev.wr if r[0] == "v" and r != "vcc"}
            if vw2 & cur.rd: n = max(n, 2)
        if "widestore" in pk:
            data = set(_regs(prev.ops[0] if prev.mn.startswith("buffer_") else prev.ops[1]))
            if data & cur.wr:
                n = max(n, 2 if "valu" in ck else 1)
        return n

    def render(self):
        out = []
        hist = []
        for kind, p in self.lines:
            if kind == "c": out.append("    ; " + p); continue
            if kind == "r": out.append(p); continue
            if kind == "ln":
                out.append(p + ":")
                hist = []
                continue
            if kind == "l":
                out.append(p + ":")
                out.append("    s_nop 7")
                hist = []
                continue
            ins = p
            dist = 0; req = 0
            for prev in reversed(hist):
                nd = Asm.need(prev, ins)
                if nd > dist: req = max(req, nd - dist)
                dist += prev.states
                if dist >= 12: break
            if req > 0:
                out.append(f"    s_nop {req-1}")
                hist.append(Ins(f"s_nop {req-1}"))
            out.append("    " + ins.text)
            hist.append(ins)
            if len(hist) > 16: hist = hist[-16:]
            if ins.mn.startswith("s_cbranch") or ins.mn == "s_branch":
                pass
        return "\n".join(out) + "\n"
```

```python
import sys
sys.path.insert(0, "gen")
from asmlib import Asm
from phases import (f32bits, SCALE_LOG2E, LOG2E, v, vr, s, sr, wave_reduce_to63, row_allreduce, to_bf16_lo, round_bf16,
                    dot_slab, sum_chain, reduce8_inwave, reduce16_inwave, barrier)

REF = open("recurrent_scan__sliding_block_cached__swiglu_ffn__decode.s.ref").read()
HEADER = "\n".join(l for l in REF.split(".amdgcn_target")[0].splitlines() if l.startswith(";") and "@launch" not in l and "Override" not in l and "grid=ceil" not in l)
KN = "recurrent_scan__sliding_block_cached__swiglu_ffn__decode_kernel"

LN_RED1, LN_RED2 = 0, 64
XNBUF = 128
QPART = 2816
GUPART = 5120
OG = 23552
ST = 24576
GG = 24704
COEFO = 27008
COEFH = 27072
PS = 27264
PY = 45696
FB = 5120
LDS_BYTES = 64128 + 1408
QBUF = 0
OBUF = 1024
STATS = 9216
EPOCH = 0x0
R1 = 0x1000
R2 = 0x21000
R3 = 0x141000
R3S = 0x1C1000
R4 = 0x200000
WS_BYTES = 268435456
STAMPS = 128 << 20
MAXPOLL = 4096

S_W = 3
S_G, S_S, S_CB, S_KQ = 4, 5, 6, 7
S_T0, S_T1, S_T2, S_T3 = 8, 9, 10, 11
S_EX = 12
SRD_X, SRD_WQ, SRD_GU, SRD_WO, SRD_WD, SRD_WS, SRD_OUT = 40, 44, 48, 52, 56, 60, 64
SRD_K, SRD_V = 44, 48
S_OFFQ2 = 68
S_OFF8 = 68
S_OFFR = 73
S_WAVE = 75
S_TAG = 76
S_M0, S_M1 = 78, 79
S_C = 80
S_TMPA, S_TMPB = 82, 83
V_T, V_LANE, V_RG, V_CH, V_T16 = 0, 1, 2, 3, 4

class Ctx:
    def __init__(self): self.n = 0; self.stmod = " sc1"; self.ldmod = " sc1"
    def lab(self, b): self.n += 1; return f"L_{b}_{self.n}"

class Vm:
    def __init__(self): self.ops = []
    def issue(self, *names): self.ops += list(names)
    def wait(self, name):
        i = max(k for k, n in enumerate(self.ops) if n == name)
        return f"s_waitcnt vmcnt({len(self.ops) - 1 - i})"

class Stamper:
    def __init__(self, on, pfx): self.on = on; self.n = 0; self.pfx = pfx
    def stamp(self, a):
        if not self.on: return
        if self.n == 0:
            for k in range(16): a.I(f"s_mov_b32 s{84+k}, 0")
        a.I(f"s_memrealtime s[100:101]\ns_waitcnt lgkmcnt(0)\ns_mov_b32 s{84 + self.n}, s100")
        self.n += 1
    def stampval(self, a, sreg):
        if not self.on: return
        a.I(f"s_mov_b32 s{84 + self.n}, s{sreg}")
        self.n += 1
    def flush(self, a):
        if not self.on: return
        lab = f"L_stamp_flush_{self.pfx}"
        a.I(f"s_and_b32 s100, s{S_WAVE}, 7\ns_cmp_lg_u32 s100, 0\ns_cbranch_scc1 {lab}")
        for k in range(16): a.I(f"v_mov_b32 v{16+k}, s{84+k}")
        a.I(f"""
        s_lshl_b32 s100, s2, 6
        s_lshl_b32 s101, s{S_WAVE}, 12
        s_add_u32 s100, s100, s101
        s_add_u32 s100, s100, {STAMPS}
        v_mov_b32 v13, s100
        s_mov_b64 exec, 1
        """)
        for k in range(4): a.I(f"buffer_store_dwordx4 {vr(16+4*k,4)}, v13, {sr(SRD_WS)}, 0 offen offset:{16*k}")
        a.I("s_mov_b64 exec, -1")
        a.L(lab)

def masked(a, c, lt, body, name):
    lab = c.lab("skip_" + name)
    a.I(f"v_cmp_gt_u32 vcc, {lt}, v0\ns_and_saveexec_b64 s[{S_EX}:{S_EX+1}], vcc\ns_cbranch_execz {lab}")
    body()
    a.L(lab); a.I("s_mov_b64 exec, -1")

def masked_range(a, c, lo, hi, tmp, body, name):
    lab = c.lab("skip_" + name)
    a.I(f"v_subrev_u32 v{tmp}, {lo}, v0\nv_cmp_gt_u32 vcc, {hi-lo}, v{tmp}\ns_and_saveexec_b64 s[{S_EX}:{S_EX+1}], vcc\ns_cbranch_execz {lab}")
    body()
    a.L(lab); a.I("s_mov_b64 exec, -1")

def srd(a, dst, plo, off_s, nrec):
    if off_s is None: a.I(f"s_mov_b32 s{dst}, s{plo}\ns_mov_b32 s{dst+1}, s{plo+1}")
    else: a.I(f"s_add_u32 s{dst}, s{plo}, s{off_s}\ns_addc_u32 s{dst+1}, s{plo+1}, 0")
    a.I(f"s_mov_b32 s{dst+2}, {nrec}\ns_mov_b32 s{dst+3}, 0x00020000")

def store_granule(a, c, g4, voff, soff):
    a.I(f"v_mov_b32 v{g4+2}, s{S_TAG}\nv_mov_b32 v{g4+3}, s{S_TAG+1}")
    a.I(f"buffer_store_dwordx4 {vr(g4,4)}, v{voff}, {sr(SRD_WS)}, {soff} offen{c.stmod}")

def tagcheck(a, acc, gbases):
    first = True
    for g in gbases:
        for k, st in ((2, S_TAG), (3, S_TAG + 1)):
            if first: a.I(f"v_xor_b32 v{acc}, s{st}, v{g+k}"); first = False
            else: a.I(f"v_xor_b32 v5, s{st}, v{g+k}\nv_or_b32 v{acc}, v{acc}, v5")

SLEEP = 0
EARLY_KV = True
def poll(a, c, issue_loads, gbases, acc, name):
    top = c.lab("poll_" + name); done = c.lab("poll_done_" + name)
    a.I(f"s_mov_b32 s{S_T3}, 0\ns_mov_b64 s[14:15], exec")
    a.L(top, pad=False)
    issue_loads()
    a.I(f"s_add_u32 s{S_T3}, s{S_T3}, 1\ns_waitcnt vmcnt(0)")
    tagcheck(a, acc, gbases)
    a.I(f"""
    v_cmp_ne_u32 vcc, 0, v{acc}
    s_and_b64 exec, exec, vcc
    s_cbranch_execz {done}
    s_cmp_ge_u32 s{S_T3}, {MAXPOLL}
    s_cbranch_scc1 {done}
    """)
    if SLEEP: a.I(f"s_sleep {SLEEP}")
    a.I(f"s_branch {top}")
    a.L(done)
    a.I("s_mov_b64 exec, s[14:15]")

def poll_multi(a, c, loads, gbases, acc, name):
    n = len(loads)
    M = [16 + 2 * k for k in range(n)]
    top = c.lab("pollm_" + name); done = c.lab("pollm_done_" + name)
    a.I(f"s_mov_b32 s{S_T3}, 0\ns_mov_b64 s[14:15], exec")
    for k in range(n): a.I(f"s_mov_b64 s[{M[k]}:{M[k]+1}], exec")
    a.I("s_nop 4")
    a.L(top, pad=False)
    for k in range(n):
        sk = c.lab(f"pollm_sk{k}_" + name)
        a.I(f"s_mov_b64 exec, s[{M[k]}:{M[k]+1}]\ns_cbranch_execz {sk}")
        loads[k]()
        a.L(sk, pad=False)
    a.I(f"s_add_u32 s{S_T3}, s{S_T3}, 1\ns_waitcnt vmcnt(0)")
    for k in range(n):
        g = gbases[k]
        a.I(f"""
        s_mov_b64 exec, s[{M[k]}:{M[k]+1}]
        v_xor_b32 v{acc}, s{S_TAG}, v{g+2}
        v_xor_b32 v5, s{S_TAG+1}, v{g+3}
        v_or_b32 v{acc}, v{acc}, v5
        v_cmp_ne_u32 vcc, 0, v{acc}
        s_and_b64 s[{M[k]}:{M[k]+1}], s[{M[k]}:{M[k]+1}], vcc
        """)
    a.I(f"s_or_b64 s[12:13], s[{M[0]}:{M[0]+1}], s[{M[1]}:{M[1]+1}]")
    for k in range(2, n): a.I(f"s_or_b64 s[12:13], s[12:13], s[{M[k]}:{M[k]+1}]")
    a.I(f"""
    s_cbranch_scc0 {done}
    s_cmp_ge_u32 s{S_T3}, {MAXPOLL}
    s_cbranch_scc1 {done}
    """)
    if SLEEP: a.I(f"s_sleep {SLEEP}")
    a.I(f"s_branch {top}")
    a.L(done)
    a.I("s_mov_b64 exec, s[14:15]")

def load_tag(a, c):
    a.I(f"v_mov_b32 v12, {EPOCH}\nbuffer_load_dwordx2 v[10:11], v12, {sr(SRD_WS)}, 0 offen{c.ldmod}")
def finish_tag(a):
    a.I(f"""
    v_readfirstlane_b32 s{S_TAG}, v10
    v_readfirstlane_b32 s{S_TAG+1}, v11
    s_add_u32 s{S_TAG}, s{S_TAG}, 1
    s_addc_u32 s{S_TAG+1}, s{S_TAG+1}, 0
    """)

BULK = " nt"
D_S, D_S2, D_KV = 2, 2, 2
D_GU, D_WQ, D_WO, D_WD = 16, 36, 36, 44
WK = 56

def s_prologue(a, c):
    a.I(f"""
    s_lshr_b32 s{S_G}, s{S_W}, 4
    s_and_b32 s{S_S}, s{S_W}, 15
    s_lshr_b32 s{S_CB}, s{S_S}, 2
    s_and_b32 s{S_KQ}, s{S_S}, 3
    s_mov_b32 s{S_OFFQ2}, {72*8192}
    """)
    srd(a, SRD_X, 16, None, 1152)
    a.I(f"""
    s_mul_i32 s{S_T0}, s{S_KQ}, 1179648
    s_lshl_b32 s{S_T1}, s{S_G}, 9
    s_add_u32 s{S_T0}, s{S_T0}, s{S_T1}
    s_lshl_b32 s{S_T1}, s{S_CB}, 7
    s_add_u32 s{S_T0}, s{S_T0}, s{S_T1}
    s_sub_u32 s{S_T2}, 4718592, s{S_T0}
    """)
    srd(a, SRD_WQ, 22, S_T0, f"s{S_T2}")

def s_prologue_b(a, c):
    a.I(f"""
    v_lshrrev_b32 v{V_RG}, 3, v{V_LANE}
    v_and_b32 v{V_CH}, 7, v{V_LANE}
    """)
    for i in range(1, 5): a.I(f"s_mov_b32 s{S_OFF8+i}, {8*i*9216}")
    a.I(f"s_mov_b32 s{S_OFFR}, 9216\ns_mov_b32 s{S_OFFR+1}, 18432")
    a.I(f"""
    s_cmp_lt_u32 s{S_G}, 8
    s_cselect_b32 s{S_TMPA}, s28, s30
    s_cselect_b32 s{S_TMPB}, s29, s31
    s_mul_i32 s{S_T0}, s{S_S}, 331776
    s_and_b32 s{S_T1}, s{S_G}, 7
    s_mul_i32 s{S_T1}, s{S_T1}, 1152
    s_add_u32 s{S_T0}, s{S_T0}, s{S_T1}
    """)
    srd(a, SRD_GU, S_TMPA, S_T0, 36 * 9216)
    a.I(f"s_mul_i32 s{S_T0}, s{S_W}, 18432"); srd(a, SRD_WO, 24, S_T0, 18432)
    a.I(f"s_mul_i32 s{S_T0}, s{S_W}, 20736"); srd(a, SRD_WD, 32, S_T0, 20736)
    srd(a, SRD_OUT, 34, None, 1152)

def s_issue_x(a): a.I(f"v_lshlrev_b32 v5, 1, v0\nv_mov_b32 v6, 0\nbuffer_load_ushort v15, v5, {sr(SRD_X)}, 0 offen\nbuffer_load_ushort v14, v6, {sr(SRD_X)}, 0 offen")
def s_issue_wq(a):
    a.I(f"""
    v_lshrrev_b32 v5, 3, v0
    v_and_b32 v6, 7, v0
    v_lshlrev_b32 v5, 13, v5
    v_lshl_add_u32 v5, v6, 4, v5
    buffer_load_dwordx4 {vr(D_WQ,4)}, v5, {sr(SRD_WQ)}, 0 offen{BULK}
    buffer_load_dwordx4 {vr(D_WQ+4,4)}, v5, {sr(SRD_WQ)}, s{S_OFFQ2} offen{BULK}
    """)
def s_gu_addr(a):
    a.I(f"""
    v_mul_u32_u24 v9, 9216, v{V_RG}
    v_lshl_add_u32 v9, v{V_CH}, 4, v9
    s_lshl_b32 s{S_T0}, s{S_WAVE}, 7
    v_add_u32 v9, s{S_T0}, v9
    """)
def s_row_addr(a):
    a.I(f"""
    v_mul_u32_u24 v9, 1152, v{V_RG}
    v_lshl_add_u32 v9, v{V_CH}, 4, v9
    s_lshl_b32 s{S_T0}, s{S_WAVE}, 7
    v_add_u32 v9, s{S_T0}, v9
    """)
def s_issue_gu1(a, i):
    a.I(f"buffer_load_dwordx4 {vr(D_GU+4*i,4)}, v9, {sr(SRD_GU)}, " + ("0" if i == 0 else f"s{S_OFF8+i}") + f" offen{BULK}")
def s_issue_wo(a):
    a.I(f"buffer_load_dwordx4 {vr(D_WO,4)}, v{V_T16}, {sr(SRD_WO)}, 0 offen{BULK}")
    a.I(f"buffer_load_dwordx4 {vr(D_WO+4,4)}, v{V_T16}, {sr(SRD_WO)}, s{S_OFFR} offen{BULK}")
def s_issue_wd(a):
    a.I(f"buffer_load_dwordx4 {vr(D_WD,4)}, v{V_T16}, {sr(SRD_WD)}, 0 offen{BULK}")
    a.I(f"buffer_load_dwordx4 {vr(D_WD+4,4)}, v{V_T16}, {sr(SRD_WD)}, s{S_OFFR} offen{BULK}")
    a.I(f"buffer_load_dwordx4 {vr(D_WD+8,4)}, v{V_T16}, {sr(SRD_WD)}, s{S_OFFR+1} offen{BULK}")

def s_ln(a, c, wait_x):
    A_, B_, XF = WK, WK+1, WK+2
    R0 = WK + 4
    MEAN, VAR, CC_ = WK+22, WK+23, WK+3
    a.C("layernorm (bf16 rounding points as in the reference)")
    a.I(wait_x)
    a.I(f"""
    v_lshlrev_b32 v{XF}, 16, v15
    v_lshlrev_b32 v{CC_}, 16, v14
    v_sub_f32 v{A_}, v{XF}, v{CC_}
    v_mul_f32 v{B_}, v{A_}, v{A_}
    """)
    for sh in (1, 2, 4, 8):
        a.I(f"v_add_f32 v{A_}, v{A_}, v{A_} row_shr:{sh}\nv_add_f32 v{B_}, v{B_}, v{B_} row_shr:{sh}")
    for m, rm in ((15, "0xa"), (31, "0xc")):
        a.I(f"v_add_f32 v{A_}, v{A_}, v{A_} row_bcast:{m} row_mask:{rm}\nv_add_f32 v{B_}, v{B_}, v{B_} row_bcast:{m} row_mask:{rm}")
    a.I(f"""
    s_lshl_b32 s{S_T1}, s{S_WAVE}, 3
    v_mov_b32 v5, s{S_T1}
    v_mov_b32 v6, 0
    v_lshlrev_b32 v7, 2, v{V_LANE}
    ds_write_b32 v7, v6 offset:{XNBUF + 576*4}
    s_mov_b32 exec_lo, 0
    s_mov_b32 exec_hi, 0x80000000
    ds_write_b64 v5, {vr(A_,2)} offset:{LN_RED1}
    s_mov_b64 exec, -1
    """)
    barrier(a)
    a.I(f"ds_read_b128 {vr(R0,4)}, v6 offset:{LN_RED1}")
    for k in range(1, 4): a.I(f"ds_read_b128 {vr(R0+4*k,4)}, v6 offset:{LN_RED1+16*k}")
    a.I(f"ds_read_b64 {vr(R0+16,2)}, v6 offset:{LN_RED1+64}\ns_waitcnt lgkmcnt(0)")
    sum_chain(a, MEAN, [R0 + 2 * k for k in range(9)])
    sum_chain(a, VAR, [R0 + 2 * k + 1 for k in range(9)])
    a.I(f"""
    v_mul_f32 v{MEAN}, {f32bits(1.0/576.0):#x}, v{MEAN}
    v_mul_f32 v{VAR}, {f32bits(1.0/576.0):#x}, v{VAR}
    v_fma_f32 v{VAR}, -v{MEAN}, v{MEAN}, v{VAR}
    v_max_f32 v{VAR}, 0, v{VAR}
    v_add_f32 v{MEAN}, v{MEAN}, v{CC_}
    """)
    MB, T1, DEN, XC, RC, Q0, E_ = R0, R0+1, R0+2, R0+3, R0+4, R0+5, R0+6
    round_bf16(a, MB, MEAN); round_bf16(a, T1, VAR)
    a.I(f"v_add_f32 v{T1}, {f32bits(1e-5):#x}, v{T1}"); round_bf16(a, T1, T1)
    a.I(f"v_sqrt_f32 v{DEN}, v{T1}"); round_bf16(a, DEN, DEN)
    a.I(f"v_sub_f32 v{XC}, v{XF}, v{MB}"); round_bf16(a, XC, XC)
    a.I(f"""
    v_rcp_f32 v{RC}, v{DEN}
    v_mul_f32 v{Q0}, v{XC}, v{RC}
    v_fma_f32 v{E_}, -v{Q0}, v{DEN}, v{XC}
    v_fma_f32 v{Q0}, v{E_}, v{RC}, v{Q0}
    """)
    to_bf16_lo(a, Q0, Q0)
    a.I(f"v_lshlrev_b32 v{E_}, 2, v0\nds_write_b32 v{E_}, v{Q0} offset:{XNBUF}")
    barrier(a)

def s_qslab(a, waits):
    CL0, CL1, CH0, CH1, AD = WK, WK+1, WK+2, WK+3, WK+4
    ACC = WK + 8
    a.C("q slab: 144 rows x 64 cols")
    a.I(f"""
    v_lshrrev_b32 v{AD}, 3, v0
    v_lshlrev_b32 v{AD}, 2, v{AD}
    s_mul_i32 s{S_T0}, s{S_KQ}, 576
    v_add_u32 v{AD}, s{S_T0}, v{AD}
    ds_read_b32 v{CL0}, v{AD} offset:{XNBUF}
    ds_read_b32 v{CL1}, v{AD} offset:{XNBUF+288}
    s_waitcnt lgkmcnt(0)
    v_lshlrev_b32 v{CH0}, 16, v{CL0}
    v_lshlrev_b32 v{CH1}, 16, v{CL1}
    """)
    a.I(waits[0]); dot_slab(a, D_WQ, CL0, CH0, ACC, True)
    a.I(waits[1]); dot_slab(a, D_WQ + 4, CL1, CH1, ACC, False)
    reduce8_inwave(a, ACC)
    a.I(f"""
    v_lshrrev_b32 v{CL0}, 4, v{V_LANE}
    v_and_b32 v{CL1}, 1, v{CL0}
    v_lshlrev_b32 v{CL1}, 3, v{CL1}
    v_lshrrev_b32 v{CL0}, 1, v{CL0}
    v_lshl_add_u32 v{CL1}, v{CL0}, 2, v{CL1}
    v_and_b32 v{CL0}, 7, v{V_LANE}
    v_lshl_add_u32 v{CL1}, v{CL0}, 5, v{CL1}
    s_lshl_b32 s{S_T0}, s{S_WAVE}, 8
    v_add_u32 v{CL1}, s{S_T0}, v{CL1}
    ds_write_b32 v{CL1}, v{ACC} offset:{QPART}
    ds_write_b32 v{CL1}, v{ACC+4} offset:{QPART+16}
    """)

def s_publish_q(a, c):
    G = WK; R = WK + 4
    def body():
        a.I("v_lshlrev_b32 v5, 3, v0")
        for wv in range(9): a.I(f"ds_read_b64 {vr(R+2*wv,2)}, v5 offset:{QPART+256*wv}")
        a.I("s_waitcnt lgkmcnt(0)")
        sum_chain(a, G, [R + 2 * wv for wv in range(9)])
        sum_chain(a, G + 1, [R + 2 * wv + 1 for wv in range(9)])
        a.I(f"s_lshl_b32 s{S_T0}, s{S_W}, 9\ns_add_u32 s{S_T0}, s{S_T0}, {R1}")
        store_granule(a, c, G, V_T16, f"s{S_T0}")
    masked(a, c, 32, body, "pubq")

SEL3 = 80
def s_guslab(a, c, vm, D):
    CL, CH, AD = WK, WK + 5, WK + 10
    ACC = WK + 16
    a.C("gate/up slab: 36 rows x 576 cols, wave-owned column blocks")
    s_gu_addr(a)
    for i in range(D): s_issue_gu1(a, i); vm.issue(f"GU{i}")
    a.I(f"s_mul_i32 s{S_T0}, s{S_S}, 144\nv_lshlrev_b32 v{AD}, 2, v{V_RG}\nv_add_u32 v{AD}, s{S_T0}, v{AD}")
    for i in range(5): a.I(f"ds_read_b32 v{CL+i}, v{AD} offset:{XNBUF+32*i}")
    a.I("s_waitcnt lgkmcnt(0)")
    for i in range(5): a.I(f"v_lshlrev_b32 v{CH+i}, 16, v{CL+i}")
    for i in range(5):
        a.I(vm.wait(f"GU{i}"))
        if i + D < 5: s_issue_gu1(a, i + D); vm.issue(f"GU{i+D}")
        dot_slab(a, D_GU + 4 * i, CL + i, CH + i, ACC, i == 0)
    reduce8_inwave(a, ACC)
    X0, Y0, X1, Y1 = ACC, WK, ACC + 4, WK + 1
    G = WK + 4
    a.I(f"v_mov_b32 v{Y0}, v{X0}\nv_mov_b32 v{Y1}, v{X1}")
    a.I(f"v_permlane32_swap_b32 v{X0}, v{Y0}\nv_permlane32_swap_b32 v{X1}, v{Y1}")
    a.I(f"v_cndmask_b32 v{G}, v{X0}, v{X1}, s[{SEL3}:{SEL3+1}]\nv_cndmask_b32 v{G+1}, v{Y0}, v{Y1}, s[{SEL3}:{SEL3+1}]")
    a.I(f"""
    v_lshlrev_b32 v5, 6, v{V_CH}
    v_bfe_u32 v6, v{V_LANE}, 3, 1
    v_lshl_add_u32 v5, v6, 5, v5
    v_bfe_u32 v6, v{V_LANE}, 4, 1
    v_lshl_add_u32 v5, v6, 4, v5
    s_mul_i32 s{S_T0}, s{S_W}, 4608
    s_lshl_b32 s{S_T1}, s{S_WAVE}, 9
    s_add_u32 s{S_T0}, s{S_T0}, s{S_T1}
    s_add_u32 s{S_T0}, s{S_T0}, {R2}
    s_mov_b64 exec, 0xffffffff
    """)
    store_granule(a, c, G, 5, f"s{S_T0}")
    a.I("s_mov_b64 exec, -1")

def s_gather_c(a, c):
    G = WK; ACC = WK + 4
    def body_o():
        a.I(f"""
        s_lshl_b32 s{S_T0}, s{S_G}, 15
        s_lshl_b32 s{S_T1}, s{S_S}, 11
        s_add_u32 s{S_T0}, s{S_T0}, s{S_T1}
        s_add_u32 s{S_T0}, s{S_T0}, {R3}
        """)
        poll(a, c, lambda: a.I(f"buffer_load_dwordx4 {vr(G,4)}, v{V_T16}, {sr(SRD_WS)}, s{S_T0} offen{c.ldmod}"), [G], ACC, "o")
        a.I(f"v_lshlrev_b32 v5, 3, v0\nds_write_b64 v5, {vr(G,2)} offset:{OG}")
    masked(a, c, 128, body_o, "go")
    def body_s():
        a.I(f"""
        s_lshl_b32 s{S_T0}, s{S_G}, 9
        s_lshr_b32 s{S_T1}, s{S_S}, 3
        s_lshl_b32 s{S_T1}, s{S_T1}, 4
        s_add_u32 s{S_T0}, s{S_T0}, s{S_T1}
        s_add_u32 s{S_T0}, s{S_T0}, {R3S}
        v_lshlrev_b32 v7, 5, v6
        """)
        poll(a, c, lambda: a.I(f"buffer_load_dwordx4 {vr(G,4)}, v7, {sr(SRD_WS)}, s{S_T0} offen{c.ldmod}"), [G], ACC, "s")
        a.I(f"v_lshlrev_b32 v5, 3, v6\nds_write_b64 v5, {vr(G,2)} offset:{ST}")
    masked_range(a, c, 128, 144, 6, body_s, "gs")
    def body_g():
        a.I(f"""
        v_mul_u32_u24 v7, 7282, v6
        v_lshrrev_b32 v7, 16, v7
        v_mul_u32_u24 v8, 9, v7
        v_sub_u32 v8, v6, v8
        v_lshrrev_b32 v9, 4, v7
        v_and_b32 v10, 15, v7
        v_lshlrev_b32 v9, 7, v9
        v_add_u32 v9, v9, v10
        v_mul_u32_u24 v9, 288, v9
        v_add_u32 v9, v9, v8
        v_lshlrev_b32 v9, 4, v9
        s_lshr_b32 s{S_T0}, s{S_W}, 5
        s_mul_i32 s{S_T0}, s{S_T0}, {16*288*16}
        s_and_b32 s{S_T1}, s{S_W}, 31
        s_mul_i32 s{S_T1}, s{S_T1}, 144
        s_add_u32 s{S_T0}, s{S_T0}, s{S_T1}
        s_add_u32 s{S_T0}, s{S_T0}, {R2}
        """)
        poll(a, c, lambda: a.I(f"buffer_load_dwordx4 {vr(G,4)}, v9, {sr(SRD_WS)}, s{S_T0} offen{c.ldmod}"), [G], ACC, "g")
        a.I(f"v_lshlrev_b32 v5, 3, v6\nds_write_b64 v5, {vr(G,2)} offset:{GG}")
    masked_range(a, c, 192, 480, 6, body_g, "gg")

def s_combine(a, c):
    lab0 = c.lab("skip_oc")
    S2, F, LS, O4, M, T = WK, WK+2, WK+3, WK+4, WK+8, WK+9
    a.I(f"s_cmp_lg_u32 s{S_WAVE}, 0\ns_cbranch_scc1 {lab0}")
    a.I(f"""
    v_and_b32 v5, 15, v{V_LANE}
    v_lshlrev_b32 v6, 3, v5
    ds_read_b64 {vr(S2,2)}, v6 offset:{ST}
    v_lshlrev_b32 v6, 6, v5
    v_lshrrev_b32 v7, 4, v{V_LANE}
    v_lshl_add_u32 v6, v7, 4, v6
    ds_read_b128 {vr(O4,4)}, v6 offset:{OG}
    s_waitcnt lgkmcnt(0)
    v_mov_b32 v{M}, v{S2}
    """)
    row_allreduce(a, [M], "v_max_f32")
    a.I(f"v_sub_f32 v{F}, v{S2}, v{M}\nv_exp_f32 v{F}, v{F}\nv_mul_f32 v{LS}, v{F}, v{S2+1}")
    for k in range(4): a.I(f"v_mul_f32 v{O4+k}, v{O4+k}, v{F}")
    row_allreduce(a, [LS, O4, O4 + 1, O4 + 2, O4 + 3])
    a.I(f"v_rcp_f32 v{T}, v{LS}")
    for k in range(4): a.I(f"v_mul_f32 v{O4+k}, v{O4+k}, v{T}")
    for k in range(4): to_bf16_lo(a, O4 + k, O4 + k)
    a.I(f"""
    v_lshlrev_b32 v6, 4, v7
    ds_write_b128 v6, {vr(O4,4)} offset:{COEFO}
    v_mov_b32 v{T}, 0
    v_and_b32 v6, 7, v5
    v_lshlrev_b32 v6, 2, v6
    ds_write_b32 v6, v{T} offset:{COEFH+72}
    """)
    a.L(lab0)
    Gv, Uv, T2, E = WK, WK+1, WK+2, WK+3
    def body():
        a.I(f"""
        v_lshrrev_b32 v7, 4, v6
        v_and_b32 v8, 15, v6
        v_mul_u32_u24 v8, 72, v8
        v_lshl_add_u32 v8, v7, 2, v8
        ds_read_b32 v{Gv}, v8 offset:{GG}
        ds_read_b32 v{Uv}, v8 offset:{GG+1152}
        s_waitcnt lgkmcnt(0)
        """)
        row_allreduce(a, [Gv, Uv])
        round_bf16(a, Gv, Gv); round_bf16(a, Uv, Uv)
        a.I(f"""
        v_mul_f32 v{E}, {f32bits(-LOG2E):#x}, v{Gv}
        v_exp_f32 v{E}, v{E}
        v_add_f32 v{E}, 1.0, v{E}
        v_rcp_f32 v{E}, v{E}
        v_mul_f32 v{T2}, v{Gv}, v{E}
        """)
        round_bf16(a, T2, T2)
        a.I(f"v_mul_f32 v{T2}, v{T2}, v{Uv}")
        to_bf16_lo(a, T2, T2)
        a.I(f"v_lshlrev_b32 v8, 2, v7\nds_write_b32 v8, v{T2} offset:{COEFH}")
    masked_range(a, c, 64, 352, 6, body, "hc")

def s_slabs_c(a, c, waitsO, waitsD):
    CO, CD, HO, HD, AD = WK, WK+2, WK+5, WK+7, WK+10
    AS, AY = 16, 24
    a.I(f"v_lshlrev_b32 v{AD}, 2, v{V_RG}")
    for i in range(2): a.I(f"ds_read_b32 v{CO+i}, v{AD} offset:{COEFO+32*i}")
    for i in range(3): a.I(f"ds_read_b32 v{CD+i}, v{AD} offset:{COEFH+32*i}")
    a.I("s_waitcnt lgkmcnt(0)")
    for i in range(2): a.I(f"v_lshlrev_b32 v{HO+i}, 16, v{CO+i}")
    for i in range(3): a.I(f"v_lshlrev_b32 v{HD+i}, 16, v{CD+i}")
    for i in range(2):
        a.I(waitsO[i]); dot_slab(a, D_WO + 4 * i, CO + i, HO + i, AS, i == 0)
    for i in range(3):
        a.I(waitsD[i]); dot_slab(a, D_WD + 4 * i, CD + i, HD + i, AY, i == 0)
    reduce8_inwave(a, AS)
    reduce8_inwave(a, AY)
    G = WK + 12
    a.I(f"v_cndmask_b32 v{G}, v{AS}, v{AS+4}, s[{SEL3}:{SEL3+1}]\nv_cndmask_b32 v{G+1}, v{AY}, v{AY+4}, s[{SEL3}:{SEL3+1}]")
    a.I(f"""
    s_lshl_b32 s{S_T0}, s{S_WAVE}, 3
    v_add_u32 v5, s{S_T0}, v{V_CH}
    v_lshlrev_b32 v5, 15, v5
    v_bfe_u32 v6, v{V_LANE}, 3, 1
    v_lshl_add_u32 v5, v6, 6, v5
    v_bfe_u32 v6, v{V_LANE}, 4, 1
    v_lshl_add_u32 v5, v6, 5, v5
    v_bfe_u32 v6, v{V_LANE}, 5, 1
    v_lshl_add_u32 v5, v6, 4, v5
    s_lshl_b32 s{S_T0}, s{S_W}, 7
    s_add_u32 s{S_T0}, s{S_T0}, {R4}
    """)
    store_granule(a, c, G, 5, f"s{S_T0}")

NCONS = 72
def allreduce_x16_x32(a, r, t, op):
    a.I(f"v_mov_b32 v{t}, v{r}\nv_permlane32_swap_b32 v{r}, v{t}\n{op} v{r}, v{r}, v{t}")
    a.I(f"v_mov_b32 v{t}, v{r}\nv_permlane16_swap_b32 v{r}, v{t}\n{op} v{r}, v{r}, v{t}")

def s_final(a, c, st):
    lab = c.lab("skip_final")
    G = WK; ACC = WK + 16; T = WK + 17
    a.I(f"s_cmp_ge_u32 s{S_W}, {NCONS}\ns_cbranch_scc1 {lab}")
    a.I(f"""
    s_lshl_b32 s{S_T0}, s{S_W}, 15
    s_add_u32 s{S_T0}, s{S_T0}, {R4}
    s_add_u32 s{S_T1}, s{S_T0}, 8192
    s_add_u32 s{S_T2}, s{S_T0}, 16384
    s_add_u32 s{S_TMPA}, s{S_T0}, 24576
    s_lshl_b32 s{S_TMPB}, s{S_W}, 4
    v_and_b32 v7, 7, v{V_LANE}
    v_lshlrev_b32 v7, 1, v7
    v_add_u32 v7, s{S_TMPB}, v7
    buffer_load_ushort v15, v7, {sr(SRD_X)}, 0 offen
    """)
    offs = [S_T0, S_T1, S_T2, S_TMPA]
    def body():
        poll_multi(a, c, [lambda k=k: a.I(f"buffer_load_dwordx4 {vr(G+4*k,4)}, v{V_T16}, {sr(SRD_WS)}, s{offs[k]} offen{c.ldmod}") for k in range(4)],
                   [G + 4 * k for k in range(4)], ACC, "f")
        st.stamp(a); st.stampval(a, S_T3)
        sum_chain(a, G, [G, G + 4, G + 8, G + 12]); sum_chain(a, G + 1, [G + 1, G + 5, G + 9, G + 13])
        a.I(f"v_add_f32 v{G}, v{G}, v{G} row_ror:8\nv_add_f32 v{G+1}, v{G+1}, v{G+1} row_ror:8")
        a.I(f"v_permlane32_swap_b32 v{G}, v{G+1}\nv_add_f32 v{G}, v{G}, v{G+1}")
        a.I(f"v_mov_b32 v{T}, v{G}\nv_permlane16_swap_b32 v{G}, v{T}\nv_add_f32 v{G}, v{G}, v{T}")
        a.I(f"""
        v_lshrrev_b32 v5, 5, v{V_LANE}
        v_lshlrev_b32 v5, 5, v5
        v_and_b32 v6, 7, v{V_LANE}
        v_lshl_add_u32 v5, v6, 2, v5
        s_lshl_b32 s{S_T2}, s{S_WAVE}, 6
        v_add_u32 v5, s{S_T2}, v5
        ds_write_b32 v5, v{G} offset:{FB}
        """)
    masked(a, c, 512, body, "fg")
    barrier(a)
    st.stamp(a)
    lab3 = c.lab("skip_fin2")
    a.I(f"s_cmp_lg_u32 s{S_WAVE}, 0\ns_cbranch_scc1 {lab3}")
    SS, YY, E = WK + 10, WK + 11, WK + 12
    a.I(f"v_lshlrev_b32 v5, 2, v{V_LANE}\nds_read_b32 v{SS}, v5 offset:{FB}\nds_read_b32 v{YY}, v5 offset:{FB+256}\ns_waitcnt lgkmcnt(0)")
    a.I(f"v_add_f32 v{SS}, v{SS}, v{YY}")
    allreduce_x16_x32(a, SS, T, "v_add_f32")
    a.I(f"v_mov_b32 v{YY}, v{SS} row_shl:8")
    round_bf16(a, SS, SS); round_bf16(a, YY, YY)
    a.I(f"""
    v_mul_f32 v{E}, {f32bits(-LOG2E):#x}, v{YY}
    v_exp_f32 v{E}, v{E}
    v_add_f32 v{E}, 1.0, v{E}
    v_rcp_f32 v{E}, v{E}
    v_mul_f32 v{T}, v{YY}, v{E}
    """)
    round_bf16(a, T, T)
    a.I(f"v_mul_f32 v{T}, v{SS}, v{T}")
    round_bf16(a, T, T)
    a.I(f"v_lshlrev_b32 v{E}, 16, v15\nv_add_f32 v{T}, v{E}, v{T}")
    to_bf16_lo(a, T, T)
    a.I(f"""
    s_mov_b64 exec, 0xff
    buffer_store_short v{T}, v7, {sr(SRD_OUT)}, 0 offen
    s_mov_b64 exec, -1
    """)
    lab2 = c.lab("skip_epoch")
    a.I(f"""
    s_cmp_lg_u32 s{S_W}, 0
    s_cbranch_scc1 {lab2}
    v_mov_b32 v8, s{S_TAG}
    v_mov_b32 v9, s{S_TAG+1}
    v_mov_b32 v10, {EPOCH}
    s_mov_b64 exec, 1
    buffer_store_dwordx2 v[8:9], v10, {sr(SRD_WS)}, 0 offen sc1
    s_mov_b64 exec, -1
    """)
    a.L(lab2)
    a.L(lab3)
    a.L(lab)

def role_s(a, c, st):
    vm = Vm()
    s_prologue(a, c)
    a.I(f"s_setprio 3\ns_mov_b32 s{SEL3}, 0xff00ff00\ns_mov_b32 s{SEL3+1}, 0xff00ff00")
    st.stamp(a)
    load_tag(a, c); vm.issue("E")
    s_issue_x(a); vm.issue("X0", "X")
    s_issue_wq(a); vm.issue("WQ0", "WQ1")
    s_prologue_b(a, c)
    a.I(vm.wait("E")); finish_tag(a)
    s_ln(a, c, vm.wait("X"))
    st.stamp(a)
    s_qslab(a, [vm.wait("WQ0"), vm.wait("WQ1")])
    barrier(a)
    s_publish_q(a, c)
    st.stamp(a)
    a.I("s_setprio 0")
    s_guslab(a, c, vm, D_S)
    st.stamp(a)
    s_row_addr(a)
    lds = [("WO0", D_WO, SRD_WO, "0"), ("WO1", D_WO + 4, SRD_WO, f"s{S_OFFR}"), ("WD0", D_WD, SRD_WD, "0"), ("WD1", D_WD + 4, SRD_WD, f"s{S_OFFR}"), ("WD2", D_WD + 8, SRD_WD, f"s{S_OFFR+1}")]
    for k, (nm, d, sd, so) in enumerate(lds):
        if k >= D_S2: a.I(f"s_waitcnt vmcnt({D_S2-1})")
        a.I(f"buffer_load_dwordx4 {vr(d,4)}, v9, {sr(sd)}, {so} offen{BULK}"); vm.issue(nm)
    a.I("s_setprio 3")
    s_gather_c(a, c)
    barrier(a)
    st.stamp(a)
    s_combine(a, c)
    barrier(a)
    s_slabs_c(a, c, [vm.wait("WO0"), vm.wait("WO1")], [vm.wait("WD0"), vm.wait("WD1"), vm.wait("WD2")])
    st.stamp(a)
    s_final(a, c, st)
    st.stamp(a)
    st.flush(a)

D_K, D_V = 16, 32
KW = 48

def kv_prologue(a, c):
    a.I(f"""
    s_lshr_b32 s{S_G}, s{S_W}, 4
    s_and_b32 s{S_S}, s{S_W}, 15
    s_mov_b32 s{S_C}, {f32bits(SCALE_LOG2E):#x}
    s_lshl_b32 s{S_T0}, s{S_G}, 21
    s_lshl_b32 s{S_T1}, s{S_S}, 15
    s_add_u32 s{S_T0}, s{S_T0}, s{S_T1}
    s_add_u32 s{S_T0}, s{S_T0}, 1572864
    """)
    srd(a, SRD_K, 18, S_T0, 32768)
    srd(a, SRD_V, 20, S_T0, 32768)

def kv_issue_paced(a, D):
    a.I(f"""
    v_lshrrev_b32 v5, 6, v0
    v_lshlrev_b32 v5, 12, v5
    v_and_b32 v6, 15, v{V_LANE}
    v_lshrrev_b32 v7, 4, v{V_LANE}
    v_lshl_add_u32 v8, v6, 8, v5
    v_lshl_add_u32 v8, v7, 4, v8
    v_lshl_add_u32 v9, v7, 10, v5
    v_lshl_add_u32 v9, v6, 4, v9
    """)
    k = 0
    for st in range(4):
        if k >= D: a.I(f"s_waitcnt vmcnt({D-1})")
        a.I(f"buffer_load_dwordx4 {vr(D_K+4*st,4)}, v8, {sr(SRD_K)}, 0 offen" + (f" offset:{64*st}" if st else "") + BULK); k += 1
    for i in range(4):
        if k >= D: a.I(f"s_waitcnt vmcnt({D-1})")
        a.I(f"buffer_load_dwordx4 {vr(D_V+4*i,4)}, v9, {sr(SRD_V)}, 0 offen" + (f" offset:{256*i}" if i else "") + BULK); k += 1

def kv_gather_q(a, c, st=None):
    G = KW
    ACC = 15
    lab = c.lab("skip_gq")
    a.I(f"s_cmp_lg_u32 s{S_WAVE}, 8\ns_cbranch_scc1 {lab}")
    a.I(f"""
    v_lshrrev_b32 v6, 5, v{V_LANE}
    v_lshlrev_b32 v6, 11, v6
    v_and_b32 v7, 31, v{V_LANE}
    v_lshl_add_u32 v6, v7, 4, v6
    s_lshl_b32 s{S_T0}, s{S_G}, 13
    s_add_u32 s{S_T0}, s{S_T0}, {R1}
    s_add_u32 s{S_T1}, s{S_T0}, 4096
    """)
    lds = []
    for u, so in ((0, S_T0), (1, S_T1)):
        for k in range(4):
            lds.append(lambda u=u, so=so, k=k: a.I(f"buffer_load_dwordx4 {vr(G+16*u+4*k,4)}, v6, {sr(SRD_WS)}, s{so} offen" + (f" offset:{512*k}" if k else "") + c.ldmod))
    poll_multi(a, c, lds, [G + 4 * k for k in range(8)], ACC, "q")
    if st is not None and st.on: a.I(f"s_mov_b32 s99, s{S_T3}")
    for u in range(2):
        b = G + 16 * u
        sum_chain(a, b, [b, b + 4, b + 8, b + 12]); sum_chain(a, b + 1, [b + 1, b + 5, b + 9, b + 13])
        a.I(f"v_cvt_pk_bf16_f32 v{b}, v{b}, v{b+1}")
    a.I(f"v_lshlrev_b32 v5, 2, v{V_LANE}\nds_write_b32 v5, v{G} offset:{QBUF}\nds_write_b32 v5, v{G+16} offset:{QBUF+256}")
    a.L(lab)

def allreduce_x16_x32_kv(a, r, t, op):
    a.I(f"v_mov_b32 v{t}, v{r}\nv_permlane32_swap_b32 v{r}, v{t}\n{op} v{r}, v{r}, v{t}")
    a.I(f"v_mov_b32 v{t}, v{r}\nv_permlane16_swap_b32 v{r}, v{t}\n{op} v{r}, v{r}, v{t}")

QF = KW
SCR = KW + 16
MXR, TR, MCR, CCR, LR, PKR = 68, 69, 70, 72, 73, 74
MK = 76
BF0, BF1 = KW, KW + 4
OAR = KW + 8

def kv_masks(a):
    a.I(f"""
    v_and_b32 v5, 7, v{V_LANE}
    v_lshrrev_b32 v6, 1, v5
    v_and_b32 v7, 1, v5
    v_mov_b32 v8, 0xffff
    v_lshlrev_b32 v8, v7, v8
    v_mov_b32 v{CCR}, s{S_C}
    """.replace("v_lshlrev_b32 v8, v7, v8", "v_lshlrev_b32 v7, 4, v7\n    v_lshlrev_b32 v8, v7, v8"))
    for t in range(4):
        a.I(f"v_cmp_eq_u32 vcc, {t}, v6\nv_cndmask_b32 v{MK+t}, 0, v8, vcc")

def kv_attn(a, c, waitK, waitV):
    lab = c.lab("skip_attn")
    a.C("attention (MFMA): 16 keys x 2 heads per wave")
    a.I(f"s_cmp_ge_u32 s{S_WAVE}, 8\ns_cbranch_scc1 {lab}")
    a.I(f"""
    v_bfe_u32 v5, v{V_LANE}, 3, 1
    v_lshlrev_b32 v5, 8, v5
    v_lshrrev_b32 v6, 4, v{V_LANE}
    v_lshl_add_u32 v5, v6, 4, v5
    """)
    for st in range(4): a.I(f"ds_read_b128 {vr(QF+4*st,4)}, v5 offset:{QBUF+64*st}")
    a.I(waitK)
    for st in range(4):
        a.I(f"s_waitcnt lgkmcnt({3-st})")
        a.I(f"v_mfma_f32_16x16x32_bf16 {vr(SCR,4)}, {vr(D_K+4*st,4)}, {vr(QF+4*st,4)}, " + ("0" if st == 0 else vr(SCR, 4)))
    a.I(f"v_max3_f32 v{MXR}, v{SCR}, v{SCR+1}, v{SCR+2}\nv_max_f32 v{MXR}, v{MXR}, v{SCR+3}")
    allreduce_x16_x32_kv(a, MXR, TR, "v_max_f32")
    a.I(f"v_mul_f32 v{MCR}, v{MXR}, v{CCR}")
    for r in range(4): a.I(f"v_fma_f32 v{SCR+r}, v{SCR+r}, v{CCR}, -v{MCR}")
    for r in range(4): a.I(f"v_exp_f32 v{SCR+r}, v{SCR+r}")
    a.I(waitV)
    for i in range(4):
        bf = BF0 if i % 2 == 0 else BF1
        a.I(f"v_cvt_pk_bf16_f32 v{PKR}, v{SCR+i}, v{SCR+i}")
        for t in range(4): a.I(f"v_and_b32 v{bf+t}, v{PKR}, v{MK+t}")
        a.I(f"v_mfma_f32_16x16x32_bf16 {vr(OAR,4)}, {vr(D_V+4*i,4)}, {vr(bf,4)}, " + ("0" if i == 0 else vr(OAR, 4)))
    sum_chain(a, LR, [SCR, SCR + 1, SCR + 2, SCR + 3])
    allreduce_x16_x32_kv(a, LR, TR, "v_add_f32")
    a.I(f"s_lshl_b32 s{S_T0}, s{S_WAVE}, 10\nv_lshlrev_b32 v5, 2, v{V_LANE}\nv_add_u32 v5, s{S_T0}, v5")
    for r in range(4): a.I(f"ds_write_b32 v5, v{OAR+r} offset:{OBUF+256*r}")
    a.I(f"""
    v_mov_b32 v{MCR+1}, v{LR}
    s_lshl_b32 s{S_T0}, s{S_WAVE}, 4
    v_add_u32 v5, s{S_T0}, v{V_LANE}
    s_mov_b64 exec, 0x101
    ds_write_b64 v5, {vr(MCR,2)} offset:{STATS}
    s_mov_b64 exec, -1
    """)
    a.L(lab)

def kv_merge_publish(a, c):
    SM = KW; F = KW + 16; OP = D_K
    G = 72; MC, LL = 76, 77; GS = KW
    def body():
        a.I(f"""
        v_bfe_u32 v5, v0, 2, 1
        v_lshlrev_b32 v5, 3, v5
        """)
        for wv in range(8): a.I(f"ds_read_b64 {vr(SM+2*wv,2)}, v5 offset:{STATS+16*wv}")
        a.I(f"""
        v_lshrrev_b32 v6, 5, v0
        v_lshlrev_b32 v6, 8, v6
        v_and_b32 v7, 31, v0
        v_lshl_add_u32 v6, v7, 3, v6
        """)
        for wv in range(8): a.I(f"ds_read_b64 {vr(OP+2*wv,2)}, v6 offset:{OBUF+1024*wv}")
        a.I("s_waitcnt lgkmcnt(8)")
        mcs = [SM + 2 * wv for wv in range(8)]; ls = [SM + 2 * wv + 1 for wv in range(8)]
        a.I(f"v_max3_f32 v{MC}, v{mcs[0]}, v{mcs[1]}, v{mcs[2]}")
        a.I(f"v_max3_f32 v{MC}, v{MC}, v{mcs[3]}, v{mcs[4]}")
        a.I(f"v_max3_f32 v{MC}, v{MC}, v{mcs[5]}, v{mcs[6]}")
        a.I(f"v_max_f32 v{MC}, v{MC}, v{mcs[7]}")
        for wv in range(8): a.I(f"v_sub_f32 v{F+wv}, v{mcs[wv]}, v{MC}")
        for wv in range(8): a.I(f"v_exp_f32 v{F+wv}, v{F+wv}")
        a.I("s_waitcnt lgkmcnt(0)")
        a.I(f"v_mul_f32 v{G}, v{F}, v{OP}\nv_mul_f32 v{G+1}, v{F}, v{OP+1}")
        for wv in range(1, 8):
            a.I(f"v_fmac_f32 v{G}, v{F+wv}, v{OP+2*wv}\nv_fmac_f32 v{G+1}, v{F+wv}, v{OP+2*wv+1}")
        a.I(f"""
        v_bfe_u32 v5, v0, 2, 1
        v_lshlrev_b32 v5, 3, v5
        v_bfe_u32 v6, v0, 3, 2
        v_lshl_add_u32 v5, v6, 1, v5
        v_bfe_u32 v6, v0, 6, 1
        v_add_u32 v5, v5, v6
        v_lshlrev_b32 v5, 11, v5
        v_bfe_u32 v6, v0, 5, 1
        v_lshl_add_u32 v5, v6, 6, v5
        v_and_b32 v6, 3, v0
        v_lshl_add_u32 v5, v6, 4, v5
        s_lshl_b32 s{S_T0}, s{S_G}, 15
        s_lshl_b32 s{S_T1}, s{S_S}, 7
        s_add_u32 s{S_T0}, s{S_T0}, s{S_T1}
        s_add_u32 s{S_T0}, s{S_T0}, {R3}
        """)
        store_granule(a, c, G, 5, f"s{S_T0}")
        lab = c.lab("skip_pst")
        a.I(f"""
        v_and_b32 v6, 0x7b, v0
        v_cmp_eq_u32 vcc, 0, v6
        s_and_saveexec_b64 s[14:15], vcc
        s_cbranch_execz {lab}
        v_mov_b32 v{GS}, v{MC}
        v_mul_f32 v{GS+1}, v{F}, v{ls[0]}
        """)
        for wv in range(1, 8): a.I(f"v_fmac_f32 v{GS+1}, v{F+wv}, v{ls[wv]}")
        a.I(f"""
        v_bfe_u32 v5, v0, 2, 1
        v_lshlrev_b32 v5, 4, v5
        s_lshl_b32 s{S_T0}, s{S_W}, 5
        s_add_u32 s{S_T0}, s{S_T0}, {R3S}
        """)
        store_granule(a, c, GS, 5, f"s{S_T0}")
        a.L(lab)
    masked(a, c, 128, body, "mrg")

def role_kv(a, c, st):
    vm = Vm()
    kv_prologue(a, c)
    a.I("s_setprio 2")
    st.stamp(a)
    load_tag(a, c); vm.issue("E")
    if not EARLY_KV: a.I("s_waitcnt vmcnt(0)")
    lab = c.lab("kv_noload")
    a.I(f"s_cmp_ge_u32 s{S_WAVE}, 8\ns_cbranch_scc1 {lab}")
    kv_masks(a)
    kv_issue_paced(a, D_KV)
    a.I("s_waitcnt vmcnt(0)") if st.on else None
    a.L(lab)
    a.I("s_waitcnt vmcnt(7)")
    lab2 = c.lab("kv_w8")
    a.I(f"s_cmp_lt_u32 s{S_WAVE}, 8\ns_cbranch_scc1 {lab2}\ns_waitcnt vmcnt(0)")
    a.L(lab2)
    finish_tag(a)
    st.stamp(a)
    vm.issue("K0", "K1", "K2", "K3", "V0", "V1", "V2", "V3")
    kv_gather_q(a, c, st)
    barrier(a)
    st.stamp(a)
    kv_attn(a, c, vm.wait("K3"), vm.wait("V3"))
    barrier(a)
    kv_merge_publish(a, c)
    st.stamp(a)
    st.flush(a)

def build(stamps=False):
    a = Asm(); c = Ctx()
    a.raw(f".globl {KN}\n.p2align 8\n.type {KN},@function\n{KN}:")
    a.I(f"""
    s_cmp_ge_u32 s2, 512
    s_cbranch_scc1 L_exit
    s_load_dwordx16 s[16:31], s[0:1], 0
    s_load_dwordx8 s[32:39], s[0:1], 64
    s_and_b32 s{S_W}, s2, 255
    v_and_b32 v{V_LANE}, 63, v0
    v_lshlrev_b32 v{V_T16}, 4, v0
    v_lshrrev_b32 v5, 6, v0
    v_readfirstlane_b32 s{S_WAVE}, v5
    s_waitcnt lgkmcnt(0)
    """)
    srd(a, SRD_WS, 38, None, WS_BYTES)
    a.I("s_cmp_ge_u32 s2, 256\ns_cbranch_scc1 L_role_kv")
    role_s(a, c, Stamper(stamps, "s"))
    a.I("s_branch L_exit")
    a.L("L_role_kv")
    role_kv(a, c, Stamper(stamps, "k"))
    a.L("L_exit")
    a.I("s_endpgm")
    out = HEADER + "\n; two roles in one kernel: ids 0..255 slab/FFN role, ids 256..511 attention role; 2 workgroups per CU, all co-resident\n"
    out += f"; @launch grid=(512,1,1) block=(576,1,1) lds={LDS_BYTES}\n"
    out += '.amdgcn_target "amdgcn-amd-amdhsa--gfx950"\n.text\n' + a.render()
    out += f""".section .rodata,"a"
.p2align 6
.amdhsa_kernel {KN}
  .amdhsa_next_free_vgpr 80
  .amdhsa_next_free_sgpr {102 if stamps else 88}
  .amdhsa_accum_offset 80
  .amdhsa_group_segment_fixed_size 0
  .amdhsa_kernarg_size 96
  .amdhsa_user_sgpr_count 2
  .amdhsa_user_sgpr_kernarg_segment_ptr 1
  .amdhsa_system_sgpr_workgroup_id_x 1
.end_amdhsa_kernel
"""
    return out

if __name__ == "__main__":
    open("v5.s", "w").write(build(False))
    open("v5st.s", "w").write(build(True))
```
